```python
import torch

def _softmax(x, axis=-1):
    return torch.softmax(x, dim=axis)
def _gelu(x):
    return torch.nn.functional.gelu(x, approximate="tanh")
def _silu(x):
    return torch.nn.functional.silu(x)
def _sigmoid(x):
    return torch.sigmoid(x)
def _layernorm(x, axis=-1, eps=1e-5):
    m = x.mean(dim=axis, keepdim=True)
    v = x.var(dim=axis, keepdim=True, unbiased=False)
    return (x - m) / torch.sqrt(v + eps)
def _scatter_add(tgt, idx, src, axis=0):
    return tgt.clone().index_add_(axis, idx, src)
def _segment_sum(src, seg, n):
    out = torch.zeros((n,) + src.shape[1:], dtype=src.dtype)
    return out.index_add_(0, seg, src)
def _pad(x, pw):
    flat = tuple(v for pair in reversed(pw) for v in pair)
    return torch.nn.functional.pad(x, flat)

kernel_name = 'concat_heads__mha_block_cached__gqa_block_cached__near_ridge'

def setup_inputs():

    _w = (lambda a: (lambda t: t.to(torch.bfloat16) if t.is_floating_point() else t)(torch.as_tensor(a)))
    def _A_setup():
        B, Sq, D = 8, 192, 448
        H, Sk, Dh = 16, 1024, 256
        return {
            "x": _w((lambda *s: torch.randn(*s, dtype=torch.bfloat16) * 0.8)(B, Sq, D)),
            "k_cache": _w((lambda *s: torch.randn(*s, dtype=torch.bfloat16) * 0.8)(B, H, Sk, Dh)),
            "v_cache": _w((lambda *s: torch.randn(*s, dtype=torch.bfloat16) * 0.05)(B, H, Sk, Dh)),
            "wq": _w((lambda *s: torch.randn(*s, dtype=torch.bfloat16) * 0.8)(D, H * Dh) * (D ** -0.5)),
            "wo": _w((lambda *s: torch.randn(*s, dtype=torch.bfloat16) * 0.05)(H * Dh, D) * ((H * Dh) ** -0.5)),
        }
    _A_in = _A_setup()

    def _B_setup():
        B, Sq, D = 8, 192, 448
        Hq, Hkv, Sk, Dh = 16, 16, 1024, 256
        assert Hq % Hkv == 0, (Hq, Hkv)
        return {
            "x": _w((lambda *s: torch.randn(*s, dtype=torch.bfloat16) * 0.8)(B, Sq, D)),
            "k_cache": _w((lambda *s: torch.randn(*s, dtype=torch.bfloat16) * 0.8)(B, Hkv, Sk, Dh)),
            "v_cache": _w((lambda *s: torch.randn(*s, dtype=torch.bfloat16) * 0.05)(B, Hkv, Sk, Dh)),
            "wq": _w((lambda *s: torch.randn(*s, dtype=torch.bfloat16) * 0.8)(D, Hq * Dh) * (D ** -0.5)),
            "wo": _w((lambda *s: torch.randn(*s, dtype=torch.bfloat16) * 0.05)(Hq * Dh, D) * ((Hq * Dh) ** -0.5)),
        }
    _B_in = _B_setup()

    return {
        "A_x": _A_in["x"],
        "A_k_cache": _A_in["k_cache"],
        "A_v_cache": _A_in["v_cache"],
        "A_wq": _A_in["wq"],
        "A_wo": _A_in["wo"],
        "B_x": _B_in["x"],
        "B_k_cache": _B_in["k_cache"],
        "B_v_cache": _B_in["v_cache"],
        "B_wq": _B_in["wq"],
        "B_wo": _B_in["wo"],
    }

def reference(A_x, A_k_cache, A_v_cache, A_wq, A_wo, B_x, B_k_cache, B_v_cache, B_wq, B_wo):
    def _A_ref(x, k_cache, v_cache, wq, wo):
        B, Sq, D = x.shape
        H, Dh = 16, 256
        q = (lambda x, *d: x.permute(*d))((x @ wq).reshape(B, Sq, H, Dh), 0, 2, 1, 3)
        scores = torch.einsum("bhqd,bhkd->bhqk", q, k_cache) * (Dh ** -0.5)
        p = _softmax(scores, axis=-1)
        o = torch.einsum("bhqk,bhkd->bhqd", p, v_cache)
        return (lambda x, *d: x.permute(*d))(o, 0, 2, 1, 3).reshape(B, Sq, H * Dh) @ wo

    def _B_ref(x, k_cache, v_cache, wq, wo):
        B, Sq, D = x.shape
        Hq, Dh = 16, 256
        Hkv = k_cache.shape[1]
        rep = Hq // Hkv
        q = (lambda x, *d: x.permute(*d))((x @ wq).reshape(B, Sq, Hq, Dh), 0, 2, 1, 3)
        k = (lambda x, n, axis: torch.repeat_interleave(x, n, dim=axis))(k_cache, rep, axis=1)
        v = (lambda x, n, axis: torch.repeat_interleave(x, n, dim=axis))(v_cache, rep, axis=1)
        scores = torch.einsum("bhqd,bhkd->bhqk", q, k) * (Dh ** -0.5)
        p = _softmax(scores, axis=-1)
        o = torch.einsum("bhqk,bhkd->bhqd", p, v)
        return (lambda x, *d: x.permute(*d))(o, 0, 2, 1, 3).reshape(B, Sq, Hq * Dh) @ wo

    a = _A_ref(A_x, A_k_cache, A_v_cache, A_wq, A_wo)
    b = _B_ref(B_x, B_k_cache, B_v_cache, B_wq, B_wo)
    return torch.concatenate([a, b], axis=-1)
```

```python
NAME = 'concat_heads__mha_block_cached__gqa_block_cached__near_ridge'
WS_BYTES = 285868032

HEADER = open('cdna_kernels/%s.s.ref' % NAME).read().split('; Override launch')[0]

class Asm:
    def __init__(self):
        self.lines = []
    def __call__(self, s):
        for l in s.strip('\n').split('\n'):
            self.lines.append(l)
    def text(self):
        return '\n'.join(self.lines) + '\n'

def kernel_open(name):
    return f""".globl {name}
.p2align 8
.type {name},@function
{name}:"""

def descriptor(name, vgpr, accum, sgpr=102):
    return f""".p2align 6
.amdhsa_kernel {name}
  .amdhsa_next_free_vgpr {vgpr}
  .amdhsa_next_free_sgpr {sgpr}
  .amdhsa_accum_offset {accum}
  .amdhsa_group_segment_fixed_size 0
  .amdhsa_kernarg_size 104
  .amdhsa_user_sgpr_count 2
  .amdhsa_user_sgpr_kernarg_segment_ptr 1
  .amdhsa_system_sgpr_workgroup_id_x 1
  .amdhsa_float_denorm_mode_32 3
.end_amdhsa_kernel"""
```

```python
import re
MFMA_WS = 8
def regs(op):
    op = op.strip().lstrip('-')
    m = re.fullmatch(r'([vas])\[(\d+):(\d+)\]', op)
    if m: return {(m.group(1), i) for i in range(int(m.group(2)), int(m.group(3)) + 1)}
    m = re.fullmatch(r'([vas])(\d+)', op)
    if m: return {(m.group(1), int(m.group(2)))}
    if op == 'vcc': return {('s', 'vcc')}
    if op == 'm0': return {('s', 'm0')}
    if op == 'exec': return {('s', 'exec')}
    return set()
TRANS = ('v_exp_f32', 'v_rcp_f32', 'v_log_f32', 'v_rsq_f32', 'v_sqrt_f32')
def parse(line):
    line = line.split(';')[0].strip()
    if not line or line.endswith(':') or line.startswith('.'): return None
    p = line.split(None, 1)
    mn = p[0]
    ops = [o.strip() for o in p[1].split(',')] if len(p) > 1 else []
    if ops: ops[-1] = ops[-1].split()[0]
    d = dict(mn=mn, w=set(), r=set(), kind='other', text=line, states=1, srcc=set(), ab=set())
    if mn == 's_nop': d['states'] = int(ops[0]) + 1
    if mn.startswith('v_mfma'):
        d['kind'] = 'mfma'; d['w'] = regs(ops[0]); d['ab'] = regs(ops[1]) | regs(ops[2]); d['srcc'] = regs(ops[3]); d['r'] = d['ab'] | d['srcc']
    elif mn.startswith('v_'):
        d['kind'] = 'valu'
        d['w'] = regs(ops[0])
        for o in ops[1:]: d['r'] |= regs(o)
        if 'permlane' in mn: d['w'] |= regs(ops[1]); d['r'] |= regs(ops[0])
        if mn.startswith('v_fmac') or mn.startswith('v_dot2c'): d['r'] |= regs(ops[0])
    elif mn.startswith('ds_read'):
        d['kind'] = 'ds'; d['w'] = regs(ops[0]); d['r'] = regs(ops[1])
    elif mn.startswith('ds_'):
        d['kind'] = 'ds'
        for o in ops: d['r'] |= regs(o)
    elif mn.startswith('buffer_') or mn.startswith('global_'):
        d['kind'] = 'vmem'
        lds = line.split()[-1] == 'lds' or ' lds' in line
        d['lds'] = lds
        if 'load' in mn and not lds:
            d['w'] = regs(ops[0])
            for o in ops[1:]: d['r'] |= regs(o)
        else:
            for o in ops: d['r'] |= regs(o)
        if lds: d['r'] |= {('s', 'm0')}
        if 'store' in mn and ('x4' in mn or 'x3' in mn):
            d['wide'] = regs(ops[0]) if mn.startswith('buffer_') else regs(ops[1])
    elif mn.startswith('s_'):
        d['kind'] = 'salu'
        if ops and not mn.startswith(('s_cmp', 's_cbranch', 's_branch', 's_waitcnt', 's_nop', 's_setpc', 's_barrier', 's_sleep', 's_setprio')):
            d['w'] = regs(ops[0])
            for o in ops[1:]: d['r'] |= regs(o)
    return d
def need(p, c):
    n = 0
    if p['kind'] == 'mfma':
        if c['kind'] == 'mfma':
            if p['w'] & c['ab']: n = max(n, MFMA_WS)
            if p['w'] & c['srcc'] and p['w'] != c['srcc']: n = max(n, 6)
            if p['w'] & c['w'] and p['w'] != c['w']: n = max(n, 6)
        elif c['kind'] in ('valu', 'ds', 'vmem'):
            if p['w'] & (c['r'] | c['w']): n = max(n, MFMA_WS)
            if c['kind'] == 'valu' and p['srcc'] & c['w']: n = max(n, 3)
    if p['kind'] == 'valu':
        vw = {x for x in p['w'] if x[0] in 'va'}; sw = p['w'] - vw
        if c['kind'] == 'mfma' and vw & c['r']: n = max(n, 2)
        if p['mn'] in TRANS and c['kind'] == 'valu' and c['mn'] not in TRANS and vw & c['r']: n = max(n, 1)
        if p['mn'] in TRANS and c['kind'] in ('vmem', 'ds') and vw & c['r']: n = max(n, 1)
        if 'permlane' in c['mn'] and vw & c['r']: n = max(n, 2)
        if c['mn'].startswith(('v_readfirstlane', 'v_readlane')) and vw & c['r']: n = max(n, 1)
        if sw & c['r']:
            if c['kind'] == 'valu': n = max(n, 2)
            if c['kind'] == 'vmem': n = max(n, 5)
        if p['mn'].startswith('v_dot2') and c['kind'] != 'salu' and vw & (c['r'] | c['w']) and c['mn'] != p['mn']: n = max(n, 3)
    if p['kind'] == 'salu' and ('s', 'm0') in p['w'] and c.get('lds'): n = max(n, 1)
    if p.get('wide') and c['kind'] in ('valu', 'mfma', 'ds', 'vmem') and p['wide'] & c['w']: n = max(n, 2)
    return n
def check(lines, name=''):
    ins = [d for d in map(parse, lines) if d]
    bad = 0
    for i, c in enumerate(ins):
        dist = 0
        for j in range(i - 1, max(-1, i - 14), -1):
            p = ins[j]
            n = need(p, c)
            if n > dist:
                print(f'HAZARD {name}: need {n} have {dist}:\n   {p["text"]}\n   {c["text"]}')
                bad += 1
            dist += p['states']
            if dist >= 12: break
    return bad
```

```python
import math, sys, argparse
from asmlib import *
import hazard

SLOT, NSLOT, PIECE = 16896, 8, 1056
NF = 8
NT_W, NT_O = 14, 14
T_K0 = NT_W
T_V31 = NT_W + 63
T_O0 = NT_W + 64
NTILE = T_O0 + NT_O

S_X, S_K, S_V, S_WQ, S_WO, S_P, S_OUT = 4, 8, 12, 16, 20, 24, 28
S_W, S_LDSW, S_KOFF, S_VOFF, S_TMP, S_C, S_THR, S_LOOP = 32, 33, 34, 35, 36, 37, 38, 39
S_Q1, S_Q2, S_SO = 56, 57, 58
S_RET = 60
S_STAMP = 64
V_KV, V_WQ, V_WO = 1, 2, 3
V_KA, V_VA, V_WA = 4, 6, 8
V_X, V_PO = 10, 11
V_NM, V_MX, V_P, V_AL, V_T = 12, 15, 16, 28, 31
V_S, V_O, V_QACC = 40, 88, 64
V_ACC2 = (40, 184)
V_OUT = 232
A_Q, A_O7, A_L, A_ONE, A_X, A_F = 0, 96, 120, 168, 0, 224

def srd(s): return f's[{s}:{s+3}]'
def R(kind, b, n=4): return f'{kind}[{b}:{b+n-1}]' if n > 1 else f'{kind}{b}'
def Sreg(par, jb, qb): return V_S + par * 24 + (jb * 3 + qb) * 4
def Oreg(db, qb):
    t, jj = db >> 1, db & 1
    if t < 7: return ('v', V_O + ((t * 3 + qb) * 2 + jj) * 4)
    return ('a', A_O7 + (qb * 2 + jj) * 4)
def Obreg(t, qb): return V_O + (t * 3 + qb) * 4
def mfma(d, a, b, c): return f'  v_mfma_f32_16x16x32_bf16 {d}, {a}, {b}, {c}'
def cost(t):
    return 2 if t.split()[0] in hazard.TRANS else (0 if t.rstrip().endswith(':') else 1)

class Step:
    def __init__(self, tile):
        self.tile = tile
        self.groups = []
        self.fill = []
        self.pre = []
        self.post = []
        self.need = [('tile', tile)]
    def add(self, text, rel=0, dl=None, tag=None): self.fill.append((text, rel, dl, tag))

class Gen:
    def __init__(self, o):
        self.o = o
        self.vm = []
        self.nsite = 0
        self.stubs = []
        self.nstamp = 0

    def slot_addr(self, tile, base):
        sl = tile % NSLOT
        return f'v{base + (sl >> 2)}', (sl & 3) * SLOT

    def vm_wait(self, tags):
        last = max(i for i, t in enumerate(self.vm) if t in tags)
        n = len(self.vm) - 1 - last
        assert n <= 63, n
        return f'  s_waitcnt vmcnt({n})'

    def dma(self, tile):
        o = self.o
        base = (tile % NSLOT) * SLOT
        res = []
        for i in range(4):
            if tile < T_K0:
                setup = [f'  s_add_u32 m0, s{S_LDSW}, {base + i * PIECE}', f'  s_mov_b32 s{S_TMP}, {(tile * 32 + i) * 8192}']
                ld = f'  buffer_load_dwordx4 v{V_WQ}, {srd(S_WQ)}, s{S_TMP} offen {o.wpol} lds'
            elif tile < T_O0:
                k = tile - T_K0
                isk = k == 0 or (k & 1 and tile != T_V31)
                so, sr = (S_KOFF, S_K) if isk else (S_VOFF, S_V)
                setup = [f'  s_add_u32 m0, s{S_LDSW}, {base + i * 32}']
                if i == 0: setup.append(f'  s_add_u32 s{so}, s{so}, 0x4000')
                ld = f'  buffer_load_dwordx4 v{V_KV}, {srd(sr)}, s{so} offen offset:{i * 1024} nt lds'
            else:
                c, half = (tile - T_O0) >> 1, (tile - T_O0) & 1
                setup = [f'  s_add_u32 m0, s{S_LDSW}, {base + i * (PIECE - 896)}']
                if i == 0: setup.append(f'  s_mov_b32 s{S_TMP}, {half * 114688 + c * 128}')
                ld = f'  buffer_load_dwordx4 v{V_WO}, {srd(S_WO)}, s{S_TMP} offen offset:{i * 896} {o.wpol} lds'
            res.append((setup, ' ' + ' '.join(ld.split()).join([' ', ''])))
        return res

    def xloads(self, t):
        so = ['0', f's{S_Q1}', f's{S_Q2}']
        return [f'  buffer_load_dwordx4 {R("a", A_X + (t * 3 + qb) * 4)}, v{V_X}, {srd(S_X)}, {so[qb]} offen offset:{t * 64}' for qb in range(3)]

    def stamp(self):
        if not self.o.stamps: return []
        b = S_STAMP + 4 * self.nstamp
        self.nstamp += 1
        return [f'  s_memrealtime s[{b}:{b+1}]', f'  s_memtime s[{b+2}:{b+3}]', '  s_waitcnt lgkmcnt(0)']

    def tr_reads(self, tile, base, offs):
        va, so = self.slot_addr(tile, base)
        return lambda f: [f'  ds_read_b64_tr_b16 {R("a", f + 2 * j, 2)}, {va} offset:{so + offs[j]}' for j in range(2)]

    def qproj(self, t):
        st = Step(t)
        st.need.append(('x', t))
        for db in range(16):
            s, jj = db >> 1, db & 1
            ms = []
            for qb in range(3):
                d = R('v', V_QACC + ((s * 3 + qb) * 2 + jj) * 4)
                ms.append(lambda f, d=d, qb=qb: mfma(d, f, R('a', A_X + (t * 3 + qb) * 4), d if t else '0'))
            st.groups.append((self.tr_reads(t, V_WA, [s * 64 + jj * 8, 512 + s * 64 + jj * 8]), ms))
        return st

    def qconv(self, s):
        res = []
        for qb in range(3):
            for i in range(4):
                src = V_QACC + (s * 3 + qb) * 8 + 2 * i
                res.append(f'  v_cvt_pk_bf16_f32 v{src}, v{src}, v{src+1}')
            for i in range(4):
                src = V_QACC + (s * 3 + qb) * 8 + 2 * i
                res.append(f'  v_accvgpr_write_b32 a{A_Q + (s * 3 + qb) * 4 + i}, v{src}')
        return res

    def qk(self, j, smajor=False):
        tile = T_K0 if j == 0 else T_K0 + 2 * j - 1
        st = Step(tile)
        va, so = self.slot_addr(tile, V_KA)
        order = [(jb, s) for s in range(8) for jb in range(2)] if smajor else [(jb, s) for jb in range(2) for s in range(8)]
        for jb, s in order:
            rd = lambda f, jb=jb, s=s: [f'  ds_read_b128 {R("a", f)}, {va} offset:{so + jb * 512 + s * 64}']
            ms = []
            for qb in range(3):
                d = R('v', Sreg(j & 1, jb, qb))
                ms.append(lambda f, d=d, qb=qb, s=s: mfma(d, f, R('a', A_Q + (s * 3 + qb) * 4), d if s else '0'))
            st.groups.append((rd, ms))
        return st

    def preg(self, j): return V_S + ((j + 1) & 1) * 24 if j == 31 else V_P

    def pv(self, j):
        tile = T_V31 if j == 31 else T_K0 + 2 * j + 2
        st = Step(tile)
        P = self.preg(j)
        lm = []
        for qb in range(3):
            d = R('a', A_L + qb * 4)
            lm.append(lambda f, d=d, qb=qb: mfma(d, R('a', A_ONE), R('v', P + qb * 4), d if j else '0'))
        st.groups.append((None, lm))
        for db in range(16):
            ms = []
            for qb in range(3):
                d = R(*Oreg(db, qb))
                ms.append(lambda f, d=d, qb=qb: mfma(d, f, R('v', P + qb * 4), d if j else '0'))
            st.groups.append((self.tr_reads(tile, V_VA, [db * 32, 512 + db * 32]), ms))
        return st

    def oproj(self, c, half):
        tile = T_O0 + 2 * c + half
        st = Step(tile)
        for tp in range(4):
            for cb in range(4):
                ms = []
                for qb in range(3):
                    d = R('v', V_ACC2[c & 1] + (cb * 3 + qb) * 4)
                    ms.append(lambda f, d=d, qb=qb, tp=tp: mfma(d, f, R('v', Obreg(4 * half + tp, qb)), d if (half or tp) else '0'))
                st.groups.append((self.tr_reads(tile, V_VA, [2 * tp * 128 + cb * 32, (2 * tp + 1) * 128 + cb * 32]), ms))
        return st

    def yregs(self, par): return [Sreg(par, jb, qb) + r for qb in range(3) for jb in range(2) for r in range(4)]
    def sm_fma(self, par, jb):
        return [f'  v_fma_f32 v{Sreg(par, jb, qb) + r}, v{Sreg(par, jb, qb) + r}, s{S_C}, v{V_NM + qb}' for qb in range(3) for r in range(4)]
    def sm_max(self, par, jb):
        b = Sreg(par, jb, 0)
        res = []
        for i in range(6):
            prev = '0' if (jb == 0 and i == 0) else f'v{V_MX}'
            res.append(f'  v_max3_f32 v{V_MX}, v{b + 2 * i}, v{b + 2 * i + 1}, {prev}')
        return res
    def sm_exp(self, par): return [f'  v_exp_f32 v{r}, v{r}' for r in self.yregs(par)]
    def sm_cvt(self, par, P, qb):
        return [f'  v_cvt_pk_bf16_f32 v{P + qb * 4 + jb * 2 + i}, v{Sreg(par, jb, qb) + 2 * i}, v{Sreg(par, jb, qb) + 2 * i + 1}' for jb in range(2) for i in range(2)]
    def sm_tail(self, j, done):
        par, P = j & 1, self.preg(j)
        ex = self.sm_exp(par)
        res, pend = [], []
        for i in range(done, 24):
            res.append(ex[i])
            res += pend; pend = []
            if i % 8 == 7: pend = self.sm_cvt(par, P, i // 8)
        return res + pend[:]
    def newmax(self, par, first):
        res = []
        t = [V_T + 2 * qb for qb in range(3)]
        for qb in range(3):
            y = self.yregs(par)[qb * 8:qb * 8 + 8]
            res += [f'  v_max3_f32 v{t[qb]}, v{y[0]}, v{y[1]}, v{y[2]}', f'  v_max3_f32 v{t[qb]}, v{t[qb]}, v{y[3]}, v{y[4]}',
                    f'  v_max3_f32 v{t[qb]}, v{t[qb]}, v{y[5]}, v{y[6]}', f'  v_max_f32 v{t[qb]}, v{t[qb]}, v{y[7]}']
        for sw in ('v_permlane32_swap_b32', 'v_permlane16_swap_b32'):
            res += [f'  v_mov_b32 v{x+1}, v{x}' for x in t]
            res += ['  s_nop 1']
            res += [f'  {sw} v{x}, v{x+1}' for x in t]
            res += [f'  v_max_f32 v{x}, v{x}, v{x+1}' for x in t]
        if not first:
            res += [f'  v_max_f32 v{x}, 0, v{x}' for x in t]
            res += [f'  v_exp_f32 v{V_AL + qb}, -v{t[qb]}' for qb in range(3)]
        for qb in range(3):
            res.append(f'  v_sub_f32 v{V_NM + qb}, v{V_NM + qb}, v{t[qb]}')
            res += [f'  v_sub_f32 v{y}, v{y}, v{t[qb]}' for y in self.yregs(par)[qb * 8:qb * 8 + 8]]
        return res
    def rescale(self):
        res = ['  s_nop 7', '  s_nop 1']
        for db in range(14):
            for qb in range(3):
                b = Oreg(db, qb)[1]
                res += [f'  v_mul_f32 v{b + r}, v{b + r}, v{V_AL + qb}' for r in range(4)]
        for qb in range(3):
            for b in (Oreg(14, qb)[1], Oreg(15, qb)[1], A_L + qb * 4):
                res += [f'  v_accvgpr_read_b32 v{V_T + r}, a{b + r}' for r in range(4)]
                res += [f'  v_mul_f32 v{V_T + r}, v{V_T + r}, v{V_AL + qb}' for r in range(4)]
                res += [f'  v_accvgpr_write_b32 a{b + r}, v{V_T + r}' for r in range(4)]
        return res + ['  s_nop 1']
    def rare_site(self, target):
        return f'  s_cbranch_vccnz @{target}'

    def oconv(self, t):
        res = []
        for qb in range(3):
            src = []
            for jj in range(2):
                k, b = Oreg(2 * t + jj, qb)
                if k == 'a':
                    tmp = V_OUT + (qb * 2 + jj) * 4
                    res += [f'  v_accvgpr_read_b32 v{tmp + r}, a{b + r}' for r in range(4)]
                    b = tmp
                src.append(b)
                res += [f'  v_mul_f32 v{b + r}, v{b + r}, v{V_AL + qb}' for r in range(4)]
            res += [f'  v_cvt_pk_bf16_f32 v{Obreg(t, qb) + jj * 2 + i}, v{src[jj] + 2 * i}, v{src[jj] + 2 * i + 1}' for jj in range(2) for i in range(2)]
        return res
    def pout(self, c):
        res = []
        for qb in range(3):
            for p in range(2):
                e = qb * 2 + p
                q = V_OUT + e * 4
                for jj in range(2):
                    b = V_ACC2[c & 1] + ((2 * p + jj) * 3 + qb) * 4
                    res += [(f'  v_cvt_pk_bf16_f32 v{q + jj * 2 + i}, v{b + 2 * i}, v{b + 2 * i + 1}', None) for i in range(2)]
                res.append((f'  s_mov_b32 s{S_SO}, {(c * 24 + e) * 16384}', None))
                res.append((f'  buffer_store_dwordx4 {R("v", q)}, v{V_PO}, {srd(S_P)}, s{S_SO} offen {self.o.ppol}'.rstrip(), ('st', c)))
        return res

    def build_steps(self):
        o = self.o
        steps = [self.qproj(t) for t in range(NT_W)]
        NE = o.nexp
        st = self.qk(0, smajor=True)
        st.pre += self.stamp() + ['  s_nop 7'] + self.qconv(0) + ['  s_nop 1']
        for s in range(1, 8):
            for x in self.qconv(s): st.add(x, 0, 6 * s - 3)
        st.post += ['  s_nop 7'] + self.sm_fma(0, 0) + self.sm_fma(0, 1) + self.newmax(0, True) + self.sm_exp(0)[:NE]
        st.post += self.stamp()
        steps.append(st)
        for j in range(32):
            if j < 31:
                st = self.qk(j + 1)
                for x in self.sm_tail(j, NE): st.add(x, 0, 45)
                steps.append(st)
            st = self.pv(j)
            if j < 31:
                par = (j + 1) & 1
                for x in self.sm_fma(par, 0): st.add(x)
                for x in self.sm_max(par, 0): st.add(x)
                for x in self.sm_fma(par, 1): st.add(x, 4)
                for x in self.sm_max(par, 1): st.add(x)
                st.add(f'  v_cmp_lt_f32 vcc, s{S_THR}, v{V_MX}')
                st.add(self.rare_site(f'newmax{par}'))
                if j < 30:
                    for x in self.sm_exp(par)[:NE]: st.add(x)
                else:
                    for x in self.sm_tail(31, 0): st.add(x, 0, 48)
                st.post.append(self.rare_site('rescale'))
            else:
                for qb in range(3): st.add(f'  v_accvgpr_read_b32 v{V_AL + qb}, a{A_L + qb * 4}', 6)
                for qb in range(3): st.add(f'  v_rcp_f32 v{V_AL + qb}, v{V_AL + qb}')
                for t in range(o.oconv_early):
                    for x in self.oconv(t): st.add(x, 3 + 6 * t + 5 + 4, 48)
                st.post += self.stamp()
            steps.append(st)
        for c in range(7):
            for half in range(2):
                st = self.oproj(c, half)
                if c == 0:
                    for t in range(o.oconv_early, 8):
                        home = 0 if t <= 4 else 1
                        if home == half:
                            for x in self.oconv(t): st.add(x, 4 if half == 0 else 0, min(45, 12 * (t - 4 * half) - 3))
                if c > 0:
                    po = self.pout(c - 1)
                    h = len(po) // 2
                    for x, tag in (po[:h] if half == 0 else po[h:]): st.add(x, 4 if half == 0 else 0, None, tag)
                steps.append(st)
        steps[-1].post += ['  s_nop 7'] + [x for x, _ in self.pout(6)]
        return steps

    def emit_steps(self, steps):
        o = self.o
        frs = [(si, gi) for si, st in enumerate(steps) for gi, g in enumerate(st.groups) if g[0] is not None]
        fidx = {k: n for n, k in enumerate(frs)}
        lds_n, lastop, done = 0, {}, -1
        def issue(n):
            nonlocal lds_n
            res = []
            if n >= len(frs): return res
            si, gi = frs[n]
            if n == 0 or frs[n - 1][0] != si:
                res.append(('vmwait', steps[si].need))
                res.append(('txt', '  s_barrier'))
            for r in steps[si].groups[gi][0](A_F + (n % NF) * 4): res.append(('lds', r, n))
            return res
        def put(item, out):
            nonlocal lds_n
            if item[0] == 'vmwait': out.append(self.vm_wait(item[1]))
            elif item[0] == 'lds':
                out.append(item[1]); lastop[item[2]] = lds_n; lds_n += 1
            elif item[0] == 'vm':
                out.append(item[1]); self.vm.append(item[2])
            else: out.append(item[1])
        texts = []
        head = []
        for n in range(o.lead):
            for it in issue(n): put(it, head)
        for si, st in enumerate(steps):
            out = []
            ms = [(gi, k, m) for gi, g in enumerate(st.groups) for k, m in enumerate(g[1])]
            n = len(ms)
            mand = [[] for _ in range(n)]
            pos = 0
            for gi, g in enumerate(st.groups):
                if g[0] is not None:
                    items = issue(fidx[(si, gi)] + o.lead)
                    nl = len(g[1])
                    if len(items) > 2:
                        sp = [items[:2], items[2:3], items[3:]]
                    else:
                        sp = [items[:1], items[1:], []]
                    for k in range(nl): mand[pos + k] += sp[k]
                pos += len(g[1])
            nt = st.tile + o.ahead
            if NSLOT <= nt < NTILE:
                for i, (setup, ld) in enumerate(self.dma(nt)):
                    g0 = o.dma0 + i * o.dmastep
                    mand[g0] += [('txt', x) for x in setup]
                    mand[g0 + 1] += [('vm', ld, ('tile', nt))]
                if nt < NT_W:
                    for i, x in enumerate(self.xloads(nt)): mand[o.dma0 + 3 + i * o.dmastep] += [('vm', x, ('x', nt))]
            waits = {}
            first = {}
            for k, (gi, kk, m) in enumerate(ms):
                if kk == 0 and st.groups[gi][0] is not None: first[k] = fidx[(si, gi)]
            mc = [len(x) + (1 if (k + 1 in first and first[k + 1] % o.waitn == 0) else 0) for k, x in enumerate(mand)]
            fl = list(st.fill)
            dls = []
            d = n - 1
            for x in reversed(fl):
                d = min(d, x[2]) if x[2] is not None else d
                dls.append(d)
            dls.reverse()
            out += st.pre
            carry, fp = 0.0, 0
            for k, (gi, kk, m) in enumerate(ms):
                if k in first:
                    f = first[k]
                    if lastop[f] > done:
                        upto = f
                        while (upto + 1) % o.waitn and upto + 1 in lastop: upto += 1
                        cnt = lds_n - 1 - lastop[upto]
                        assert cnt <= 15
                        out.append(f'  s_waitcnt lgkmcnt({cnt})')
                        done = lastop[upto]
                fr = R('a', A_F + (fidx[(si, gi)] % NF) * 4) if st.groups[gi][0] is not None else None
                out.append(m(fr))
                for it in mand[k]: put(it, out)
                level, due = 2.0, 0
                for i in range(fp, len(fl)):
                    due += cost(fl[i][0])
                    if i + 1 == len(fl) or dls[i + 1] != dls[i]:
                        dd = max(dls[i], k)
                        level = max(level, (due + sum(mc[k:dd + 1])) / (dd - k + 1))
                bud = level - mc[k] + carry
                while fp < len(fl) and fl[fp][1] <= k and (dls[fp] <= k or cost(fl[fp][0]) <= bud + 0.34):
                    x = fl[fp]
                    put(('vm', x[0], x[3]) if x[3] else ('txt', x[0]), out)
                    bud -= cost(x[0]); fp += 1
                carry = max(-2.0, min(bud, 1.0))
            assert fp == len(fl), (si, fp, len(fl))
            out += st.post
            texts.append(out)
        return head, texts

    def resolve(self, lines):
        res = []
        for l in lines:
            if '@' in l:
                tgt = l.split('@')[1]
                k = self.nsite; self.nsite += 1
                res += [l.split('@')[0] + f'L_stub{k}', f'L_back{k}:']
                self.stubs += [f'L_stub{k}:', f'  s_call_b64 s[{S_RET}:{S_RET+1}], L_{tgt}', f'  s_branch L_back{k}']
            else: res.append(l)
        return res

    def prologue(self):
        o = self.o
        a = Asm()
        a(f"""
  s_cmp_ge_u32 s2, 256
  s_cbranch_scc1 L_end""")
        for x in self.stamp(): a(x)
        a(f"""
  s_load_dwordx16 s[36:51], s[0:1], 0
  s_load_dwordx4 s[52:55], s[0:1], 64
  s_load_dwordx2 s[{S_P}:{S_P+1}], s[0:1], 96
  s_getpc_b64 s[62:63]
  v_lshlrev_b32 v20, 7, v0
  v_add_u32 v21, 0x8000, v20
  v_add_u32 v22, 0x10000, v20
  v_min_u32 v21, L_code_end-{NAME}_kernel-256, v21
  v_min_u32 v22, L_code_end-{NAME}_kernel-256, v22
  global_load_dword v23, v20, s[62:63]
  global_load_dword v23, v21, s[62:63]
  global_load_dword v23, v22, s[62:63]
  v_lshrrev_b32 v12, 6, v0
  v_and_b32 v0, 63, v0
  v_readfirstlane_b32 s{S_W}, v12
  s_and_b32 s3, s2, 7
  s_lshr_b32 s59, s2, 3
  s_lshl_b32 s3, s3, 5
  s_add_u32 s3, s3, s59
  s_and_b32 s59, s3, 15          ; h
  s_bfe_u32 s60, s3, 0x30004     ; b
  s_mul_i32 s{S_LDSW}, s{S_W}, {4 * PIECE}
  v_lshlrev_b32 v13, 4, v0
  v_lshl_add_u32 v{V_KV}, v12, 12, v13
  v_and_b32 v14, 31, v0
  v_lshrrev_b32 v15, 5, v0
  v_lshlrev_b32 v14, 4, v14
  v_lshl_add_u32 v14, v15, 15, v14
  v_lshl_add_u32 v{V_WQ}, v12, 16, v14
  v_lshrrev_b32 v14, 3, v0
  v_lshlrev_b32 v14, 2, v14
  v_add_u32 v14, v14, v12
  v_mul_u32_u24 v14, {4 * 896}, v14
  v_and_b32 v15, 7, v0
  v_lshl_add_u32 v{V_WO}, v15, 4, v14
  v_and_b32 v14, 15, v0
  v_lshrrev_b32 v15, 4, v0
  v_mul_u32_u24 v16, {PIECE}, v14
  v_lshl_add_u32 v{V_KA}, v15, 4, v16
  v_add_u32 v{V_KA+1}, {4 * SLOT}, v{V_KA}
  v_mul_u32_u24 v16, 48, v12
  v_add_u32 v16, v16, v14
  v_mul_u32_u24 v16, 896, v16
  v_lshl_add_u32 v{V_X}, v15, 4, v16
  v_lshrrev_b32 v14, 2, v0
  v_and_b32 v15, 3, v0
  v_mul_u32_u24 v16, {PIECE}, v14
  v_lshl_add_u32 v{V_VA}, v15, 3, v16
  v_add_u32 v{V_VA+1}, {4 * SLOT}, v{V_VA}
  v_lshl_add_u32 v{V_WA}, v15, 4, v16
  v_add_u32 v{V_WA+1}, {4 * SLOT}, v{V_WA}
  v_mul_u32_u24 v14, {6 * 16384}, v12
  v_add_u32 v{V_PO}, v14, v13
  v_mov_b32 v14, 0x3f803f80
  v_mov_b32 v{V_NM}, 0
  v_mov_b32 v{V_NM+1}, 0
  v_accvgpr_write_b32 a{A_ONE}, v14
  v_accvgpr_write_b32 a{A_ONE+1}, v14
  v_accvgpr_write_b32 a{A_ONE+2}, v14
  v_accvgpr_write_b32 a{A_ONE+3}, v14
  v_mov_b32 v{V_NM+2}, 0
  s_waitcnt lgkmcnt(0)
  s_cmp_ge_u32 s3, 128
  s_cselect_b64 s[{S_X}:{S_X+1}], s[46:47], s[36:37]
  s_cselect_b64 s[{S_K}:{S_K+1}], s[48:49], s[38:39]
  s_cselect_b64 s[{S_V}:{S_V+1}], s[50:51], s[40:41]
  s_cselect_b64 s[{S_WQ}:{S_WQ+1}], s[52:53], s[42:43]
  s_cselect_b64 s[{S_WO}:{S_WO+1}], s[54:55], s[44:45]
  s_mul_i32 s61, s60, 172032
  s_add_u32 s{S_X}, s{S_X}, s61
  s_addc_u32 s{S_X+1}, s{S_X+1}, 0
  s_mov_b32 s{S_X+2}, 172032
  s_mov_b32 s{S_X+3}, 0x20000
  s_lshl_b32 s61, s59, 9
  s_add_u32 s{S_WQ}, s{S_WQ}, s61
  s_addc_u32 s{S_WQ+1}, s{S_WQ+1}, 0
  s_sub_u32 s{S_WQ+2}, {448 * 8192}, s61
  s_mov_b32 s{S_WQ+3}, 0x20000
  s_mov_b32 s{S_Q1}, {16 * 896}
  s_mov_b32 s{S_Q2}, {32 * 896}""")
        self.vm += ['pf'] * 3
        for t in range(NSLOT):
            for x in self.xloads(t):
                a(x); self.vm.append(('x', t))
            for setup, ld in self.dma(t):
                for x in setup: a(x)
                a(ld); self.vm.append(('tile', t))
        a(f"""
  s_and_b32 s61, s3, 127
  s_lshl_b32 s61, s61, 19
  s_add_u32 s{S_K}, s{S_K}, s61
  s_addc_u32 s{S_K+1}, s{S_K+1}, 0
  s_mov_b32 s{S_K+2}, 0x80000
  s_mov_b32 s{S_K+3}, 0x20000
  s_add_u32 s{S_V}, s{S_V}, s61
  s_addc_u32 s{S_V+1}, s{S_V+1}, 0
  s_mov_b32 s{S_V+2}, 0x80000
  s_mov_b32 s{S_V+3}, 0x20000
  s_mul_i32 s61, s59, 229376
  s_add_u32 s{S_WO}, s{S_WO}, s61
  s_addc_u32 s{S_WO+1}, s{S_WO+1}, 0
  s_mov_b32 s{S_WO+2}, 229376
  s_mov_b32 s{S_WO+3}, 0x20000
  s_lshr_b32 s61, s3, 4
  s_mul_i32 s61, s61, {168 * 16384}
  s_lshl_b32 s59, s59, 10
  s_add_u32 s61, s61, s59
  s_add_u32 s{S_P}, s{S_P}, s61
  s_addc_u32 s{S_P+1}, s{S_P+1}, 0
  s_mov_b32 s{S_P+2}, {168 * 16384}
  s_mov_b32 s{S_P+3}, 0x20000
  s_mov_b32 s{S_KOFF}, 0xffffc000
  s_mov_b32 s{S_VOFF}, 0xffffc000
  s_mov_b32 s{S_C}, {f32(math.log2(math.e) / 16)}
  s_mov_b32 s{S_THR}, {f32(o.thr)}""")
        return a.lines

    def stamp_out(self):
        if not self.o.stamps: return []
        n = self.nstamp
        a = Asm()
        a(f"""
  s_load_dwordx2 s[12:13], s[0:1], 96
  s_mul_i32 s14, s2, {n * 16}
  v_mov_b32 v2, s14
  s_waitcnt lgkmcnt(0)
  s_add_u32 s12, s12, {WS_BYTES - 256 * n * 16}
  s_addc_u32 s13, s13, 0
  s_cmp_lg_u32 s{S_W}, 0
  s_cbranch_scc1 L_end""")
        for i in range(n):
            for r in range(4): a(f'  v_mov_b32 v{4 + r}, s{S_STAMP + 4 * i + r}')
            a(f'  global_store_dwordx4 v2, v[4:7], s[12:13] offset:{16 * i}\n  s_nop 1')
        a('  s_waitcnt vmcnt(0)')
        return a.lines

    def main_kernel(self):
        o = self.o
        pro = self.prologue()
        steps = self.build_steps()
        head, texts = self.emit_steps(steps)
        flat = pro + head + [l for t in texts for l in t]
        bad = hazard.check([l.replace('@', 'L_') for l in flat], 'main')
        for par in range(2): bad += hazard.check(self.newmax(par, False), 'newmax')
        bad += hazard.check(self.rescale(), 'rescale')
        assert not bad
        l0 = next(i for i in range(T_K0, T_O0) if texts[i:i + 8] == texts[i + 8:i + 16])
        n = 1
        while texts[l0 + 8 * n:l0 + 8 * n + 8] == texts[l0:l0 + 8]: n += 1
        print(f'loop: steps {l0}..{l0 + 8 * n - 1}, {n} trips', file=sys.stderr)
        body = pro + head
        for t in texts[:l0]: body += self.resolve(t)
        body += [f'  s_mov_b32 s{S_LOOP}, {n}', '.p2align 3', 'L_loop:']
        for t in texts[l0:l0 + 8]: body += self.resolve(t)
        body += [f'  s_sub_u32 s{S_LOOP}, s{S_LOOP}, 1', f'  s_cmp_lg_u32 s{S_LOOP}, 0', '  s_cbranch_scc1 L_loop']
        for t in texts[l0 + 8 * n:]: body += self.resolve(t)
        body += ['  s_waitcnt vmcnt(0)'] + self.stamp() + self.stamp_out()
        body += ['L_end:', '  s_endpgm'] + self.stubs
        for par in range(2): body += [f'L_newmax{par}:'] + self.newmax(par, False) + [f'  s_setpc_b64 s[{S_RET}:{S_RET+1}]']
        body += ['L_rescale:'] + self.rescale() + [f'  s_setpc_b64 s[{S_RET}:{S_RET+1}]', 'L_code_end:']
        return body

def f32(x):
    import struct
    return hex(struct.unpack('<I', struct.pack('<f', x))[0])

def reduce_kernel():
    a = Asm()
    a(f"""
  s_cmp_ge_u32 s2, 672
  s_cbranch_scc1 L_rend
  s_load_dwordx2 s[4:5], s[0:1], 96
  s_load_dwordx2 s[8:9], s[0:1], 80
  v_lshrrev_b32 v1, 6, v0
  v_and_b32 v0, 63, v0
  v_readfirstlane_b32 s3, v1
  s_lshl_b32 s12, s2, 2
  s_add_u32 s12, s12, s3
  s_mul_hi_u32 s13, s12, {(2**32 + 167) // 168}
  s_mul_i32 s14, s13, 168
  s_sub_u32 s14, s12, s14         ; unit
  s_mul_hi_u32 s15, s14, {(2**32 + 5) // 6}
  s_mul_i32 s16, s15, 6
  s_sub_u32 s16, s14, s16         ; e
  s_lshr_b32 s17, s15, 2          ; c
  s_and_b32 s15, s15, 3           ; w
  s_lshl_b32 s12, s12, 14
  v_lshlrev_b32 v1, 4, v0
  s_waitcnt lgkmcnt(0)
  s_add_u32 s4, s4, s12
  s_addc_u32 s5, s5, 0
  s_mov_b32 s6, 16384
  s_mov_b32 s7, 0x20000
  s_mov_b32 s10, {8 * 192 * 896 * 2}
  s_mov_b32 s11, 0x20000""")
    for h in range(16):
        if h % 4 == 0: a(f'  s_mov_b32 s20, {h * 1024}')
        a(f'  buffer_load_dwordx4 v[{16 + 4 * h}:{19 + 4 * h}], v1, s[4:7], s20 offen offset:{(h % 4) * 1024}')
    a(f"""
  s_and_b32 s18, s13, 7
  s_mul_i32 s18, s18, 192
  s_mul_i32 s15, s15, 48
  s_add_u32 s18, s18, s15
  s_lshr_b32 s19, s16, 1
  s_lshl_b32 s19, s19, 4
  s_add_u32 s18, s18, s19
  s_mul_i32 s18, s18, 1792
  s_lshr_b32 s19, s13, 3
  s_mul_i32 s19, s19, 896
  s_add_u32 s18, s18, s19
  s_lshl_b32 s17, s17, 7
  s_add_u32 s18, s18, s17
  s_and_b32 s16, s16, 1
  s_lshl_b32 s16, s16, 6
  s_add_u32 s18, s18, s16
  v_and_b32 v2, 15, v0
  v_lshrrev_b32 v3, 4, v0
  v_mul_u32_u24 v2, 1792, v2
  v_lshl_add_u32 v2, v3, 3, v2""")
    for h in range(16):
        a(f'  s_waitcnt vmcnt({15 - h})')
        for r in range(4):
            x = 16 + 4 * h + r
            if h == 0:
                a(f'  v_lshlrev_b32 v{4 + 2 * r}, 16, v{x}\n  v_and_b32 v{5 + 2 * r}, 0xffff0000, v{x}')
            else:
                a(f'  v_lshlrev_b32 v12, 16, v{x}\n  v_and_b32 v13, 0xffff0000, v{x}\n  v_add_f32 v{4 + 2 * r}, v{4 + 2 * r}, v12\n  v_add_f32 v{5 + 2 * r}, v{5 + 2 * r}, v13')
    for r in range(4): a(f'  v_cvt_pk_bf16_f32 v{12 + r}, v{4 + 2 * r}, v{5 + 2 * r}')
    a("""
  buffer_store_dwordx2 v[12:13], v2, s[8:11], s18 offen
  buffer_store_dwordx2 v[14:15], v2, s[8:11], s18 offen offset:32
  s_waitcnt vmcnt(0)
L_rend:
  s_endpgm""")
    return a.lines

def main():
    ap = argparse.ArgumentParser()
    ap.add_argument('-o', default='k.s')
    ap.add_argument('--stamps', type=int, default=0)
    ap.add_argument('--lead', type=int, default=6)
    ap.add_argument('--waitn', type=int, default=2)
    ap.add_argument('--ahead', type=int, default=6)
    ap.add_argument('--dma0', type=int, default=2)
    ap.add_argument('--dmastep', type=int, default=7)
    ap.add_argument('--nexp', type=int, default=5)
    ap.add_argument('--oconv_early', type=int, default=2)
    ap.add_argument('--thr', type=float, default=8.0)
    ap.add_argument('--wpol', default='')
    ap.add_argument('--ppol', default='')
    o = ap.parse_args()
    g = Gen(o)
    k = NAME + '_kernel'
    a = Asm()
    a(HEADER)
    a(f'; @launch kernel={k} grid=(256,1,1) block=(256,1,1) lds={NSLOT * SLOT}')
    a('; @launch kernel=reduce_kernel grid=(672,1,1) block=(256,1,1) lds=0')
    a('.amdgcn_target "amdgcn-amd-amdhsa--gfx950"\n.text')
    a(kernel_open(k))
    a.lines += g.main_kernel()
    a(kernel_open('reduce_kernel'))
    a.lines += reduce_kernel()
    a('.section .rodata,"a"')
    a(descriptor(k, 512, 256))
    a(descriptor('reduce_kernel', 80, 80))
    open(o.o, 'w').write(a.text())
    print('stamps', g.nstamp, file=sys.stderr)
main()
```

```python
import math, sys, argparse, struct
from asmlib import *
import hazard

SLOT, PIECE = 16896, 1056
NF = 8
PART_BYTES = 168 * 16384
FLAG_OFF = 16 * PART_BYTES

S_X, S_K, S_V, S_WQ, S_WO, S_P, S_OUT = 4, 8, 12, 16, 20, 24, 28
S_W, S_LDSW, S_KOFF, S_VOFF, S_TMP, S_C, S_THR, S_LOOP = 32, 33, 34, 35, 36, 37, 38, 39
S_R, S_FL, S_DBG = 40, 44, 48
S_SO, S_RETRY, S_XCC, S_H, S_ITEM, S_OO, S_T2, S_SPIN = 52, 53, 54, 55, 56, 57, 58, 59
S_RET = 60
S_RD = 64
S_OUTD = 68
V_KV, V_WO, V_KA, V_VA, V_PO = 1, 2, 3, 6, 9
V_L, V_AL = 10, 13
V_P, V_NM, V_S, V_O, V_QACC = 16, 28, 40, 88, 64
V_WQ, V_WA, V_XD, V_XA, V_XT, V_ONE = 16, 17, 20, 22, 24, 26
V_T = 16
V_ACC2 = (40, 184)
V_OUT = 232
V_FO, V_FR, V_FV, V_RO, V_OA, V_SEL, V_RA = 3, 4, 5, 1, 10, 16, 20
A_Q, A_O7, A_L, A_ONE, A_X, A_F, A_TR = 0, 96, 120, 168, 0, 224, 204
A_RB = (0, 66, 132)

def f32(x): return hex(struct.unpack('<I', struct.pack('<f', x))[0])
def srd(s): return f's[{s}:{s+3}]'
def R(kind, b, n=4): return f'{kind}[{b}:{b+n-1}]' if n > 1 else f'{kind}{b}'
def Sreg(par, jb, qb): return V_S + par * 24 + (jb * 3 + qb) * 4
def Oreg(db, qb):
    t, jj = db >> 1, db & 1
    if t < 7: return ('v', V_O + ((t * 3 + qb) * 2 + jj) * 4)
    return ('a', A_O7 + (qb * 2 + jj) * 4)
def Obreg(t, qb): return V_O + (t * 3 + qb) * 4
def mfma(d, a, b, c): return f'  v_mfma_f32_16x16x32_bf16 {d}, {a}, {b}, {c}'
def cost(t):
    w = t.split()[0]
    return 2 if w in hazard.TRANS else (4 if w.startswith('v_mfma') else 1)
def clean(s): return '  ' + ' '.join(s.split())

class Step:
    def __init__(self, tile):
        self.tile = tile
        self.groups = []
        self.fill = []
        self.pre, self.post = [], []
        self.need = []
        self.after_bar = []
    def add(self, item, rel=0, dl=None):
        if isinstance(item, str): item = ('txt', item)
        self.fill.append((item, rel, dl))

class Gen:
    def __init__(self, o):
        self.o = o
        self.NS = o.nslot
        self.vm = []
        self.nsite = 0
        self.stubs = []
        self.ntrace = [0, 0, 0]
        main = [('W', i) for i in range(14)] + [('K', 0)]
        for j in range(31): main += [('K', j + 1), ('V', j)]
        main += [('V', 31)] + [('O', i) for i in range(14)]
        use = {t: i for i, t in enumerate(main)}
        first = [('X', 0), ('X', 1), ('W', 0), ('X', 2), ('W', 1), ('X', 3), ('W', 2)]
        plan = {-1: first[:o.first], 0: first[o.first:]}
        for i in range(3, 14): plan.setdefault(i - 3, []).append(('W', i))
        for k in range(4, 11): plan.setdefault(k - 4, []).append(('X', k))
        for i in range(14, len(main)): plan.setdefault(i - (self.NS - 2), []).append(main[i])
        rel = {t: use[t] + 2 for t in main}
        rel.update({('X', k): (k if k > 1 else 0) for k in range(11)})
        free, held = list(range(self.NS)), []
        self.slots, self.prev = {}, {}
        last = {}
        for b in sorted(plan):
            for t in [t for t in held if rel[t] <= b]:
                held.remove(t); free.append(self.slots[t])
            for t in plan[b]:
                sl = free.pop(0)
                self.slots[t] = sl; self.prev[t] = last.get(sl); last[sl] = t; held.append(t)
        self.plan = plan
        self.LDSF = self.NS * SLOT

    def slot(self, tile): return self.slots[tile]
    def slot_addr(self, tile, base):
        sl = self.slot(tile)
        return f'v{base + sl // 3}', (sl % 3) * SLOT

    def vm_wait(self, tags):
        last = max(i for i, t in enumerate(self.vm) if t in tags)
        n = len(self.vm) - 1 - last
        return f'  s_waitcnt vmcnt({min(n, 63)})'

    def dma(self, tile, slot=None):
        o = self.o
        kind, k = tile
        base = (self.slot(tile) if slot is None else slot) * SLOT
        res = []
        for i in range(4):
            if kind == 'X':
                p = 4 * k + i
                if p >= 42: break
                T, pi = p // 6, p % 6
                setup = [f's_add_u32 m0, s{S_LDSW}, {base + i * 1024}', f's_mov_b32 s{S_TMP}, {pi * 8 * 896 + T * 128}']
                ld = f'buffer_load_dwordx4 v{V_XD + (pi & 1)}, {srd(S_X)}, s{S_TMP} offen {o.xpol} lds'
            elif kind == 'W':
                T, hf = k >> 1, k & 1
                setup = [f's_add_u32 m0, s{S_LDSW}, {base + i * PIECE}', f's_mov_b32 s{S_TMP}, {(64 * T + i) * 8192 + hf * 256}']
                ld = f'buffer_load_dwordx4 v{V_WQ}, {srd(S_WQ)}, s{S_TMP} offen {o.wpol} lds'
            elif kind in 'KV':
                so, sr = (S_KOFF, S_K) if kind == 'K' else (S_VOFF, S_V)
                setup = [f's_add_u32 m0, s{S_LDSW}, {base + i * 32}']
                if i == 0: setup.append(f's_add_u32 s{so}, s{so}, 0x4000')
                ld = f'buffer_load_dwordx4 v{V_KV}, {srd(sr)}, s{so} offen offset:{i * 1024} nt lds'
            else:
                c, half = k >> 1, k & 1
                setup = [f's_add_u32 m0, s{S_LDSW}, {base + i * (PIECE - 896)}']
                if i == 0: setup.append(f's_mov_b32 s{S_TMP}, {half * 114688 + c * 128}')
                ld = f'buffer_load_dwordx4 v{V_WO}, {srd(S_WO)}, s{S_TMP} offen offset:{i * 896} {o.wpol} lds'
            res.append(([clean(x) for x in setup], clean(ld)))
        return res

    def xreads(self, k):
        res = []
        for p in range(4 * k, min(4 * k + 4, 42), 2):
            T, qb = p // 6, (p % 6) // 2
            off = self.slot(('X', k)) * SLOT + (p % 4) * 1024
            for kk in range(2):
                res.append([('txt', f'  v_add_u32 v{V_XT + kk}, {off}, v{V_XA + kk}'),
                            ('lds', f'  ds_read_b128 {R("a", A_X + ((2 * T + kk) * 3 + qb) * 4)}, v{V_XT + kk}', ('X', k))])
        return res

    def trace(self):
        if not self.o.trace: return []
        return ['  s_mov_b32 m0, s94', '  s_add_u32 s94, s94, 1', '  v_accvgpr_read_b32 v0, a210', '  s_nop 0', '  v_writelane_b32 v0, s90, m0', '  s_nop 0', '  v_accvgpr_write_b32 a210, v0',
                '  v_accvgpr_read_b32 v0, a211', '  s_nop 0', '  v_writelane_b32 v0, s92, m0', '  s_nop 0', '  v_accvgpr_write_b32 a211, v0',
                '  s_memrealtime s[90:91]', '  s_memtime s[92:93]']
    def trace_bank(self, k):
        if not self.o.trace: return []
        return [f'  v_accvgpr_mov_b32 a{A_TR + 2 * k}, a210', f'  v_accvgpr_mov_b32 a{A_TR + 1 + 2 * k}, a211', '  s_mov_b32 s94, 0']
    def trace_out(self):
        if not self.o.trace: return []
        a = Asm()
        a('  s_waitcnt lgkmcnt(0)')
        for x in self.trace() + ['  s_waitcnt lgkmcnt(0)'] + self.trace() + self.trace_bank(2): a(x)
        a(f"""
  s_load_dwordx2 s[12:13], s[0:1], 96
  s_mul_i32 s14, s2, 2048
  v_mbcnt_lo_u32_b32 v0, -1, 0
  v_mbcnt_hi_u32_b32 v0, -1, v0
  v_lshlrev_b32 v2, 2, v0
  v_add_u32 v2, s14, v2
  v_mov_b32 v3, s{S_XCC}
  s_waitcnt lgkmcnt(0)
  s_add_u32 s12, s12, {WS_BYTES - 256 * 2048}
  s_addc_u32 s13, s13, 0
  s_cmp_lg_u32 s{S_W}, {self.o.trace - 1}
  s_cbranch_scc1 L_end""")
        for i in range(6): a(f'  global_store_dword v2, a{A_TR + i}, s[12:13] offset:{256 * i}')
        a('  global_store_dword v2, v3, s[12:13] offset:1536')
        a('  s_waitcnt vmcnt(0)')
        return a.lines

    def tr_reads(self, tile, base, offs):
        va, so = self.slot_addr(tile, base)
        return lambda f: [f'  ds_read_b64_tr_b16 {R("a", f + 2 * j, 2)}, {va} offset:{so + offs[j]}' for j in range(2)]

    @staticmethod
    def walk(gi, flipk):
        qs = (0, 1, 2) if gi % 2 == 0 else (2, 1, 0)
        k0 = (gi & 1) if flipk else 0
        return [(q, k) for i, q in enumerate(qs) for k in ((k0, 1 - k0) if i % 2 == 0 else (1 - k0, k0))]

    def chain_group(self, gi, flipk, acc, bop, seen, init):
        ms = []
        for qb, k in self.walk(gi, flipk):
            d = acc(qb)
            c = d if d in seen else init(qb)
            seen.add(d)
            ms.append((lambda f, d=d, b=bop(qb, k), c=c: mfma(d, f, b, c), k))
        return ms

    def qproj(self, t, seen):
        tile = ('W', t)
        st = Step(tile)
        T, hf = t >> 1, t & 1
        for g in range(8):
            s, jj = 4 * hf + (g >> 1), g & 1
            col = (s & 3) * 64 + jj * 8
            rd = [self.tr_reads(tile, V_WA, [2 * kk * 256 + col, (2 * kk + 1) * 256 + col]) for kk in range(2)]
            st.groups.append((rd, self.chain_group(g, True, lambda qb: R('v', V_QACC + ((s * 3 + qb) * 2 + jj) * 4),
                                                   lambda qb, k: R('a', A_X + ((2 * T + k) * 3 + qb) * 4), seen, lambda qb: '0')))
        return st

    def qconv(self, s):
        res = []
        for qb in range(3):
            b = V_QACC + (s * 3 + qb) * 8
            res += [f'  v_mul_f32 v{b + i}, s{S_C}, v{b + i}' for i in range(8)]
            res += [f'  v_cvt_pk_bf16_f32 v{b + 2 * i}, v{b + 2 * i}, v{b + 2 * i + 1}' for i in range(4)]
            res += [f'  v_accvgpr_write_b32 a{A_Q + (s * 3 + qb) * 4 + i}, v{b + 2 * i}' for i in range(4)]
        return res

    def qk(self, j, zero=False, smajor=False):
        tile = ('K', j)
        st = Step(tile)
        va, so = self.slot_addr(tile, V_KA)
        seen = set()
        order = [(jb, sp) for sp in range(4) for jb in range(2)] if smajor else [(jb, sp if jb == 0 else 3 - sp) for jb in range(2) for sp in range(4)]
        for g, (jb, sp) in enumerate(order):
            rd = [(lambda f, s=2 * sp + k, jb=jb: [f'  ds_read_b128 {R("a", f)}, {va} offset:{so + jb * 512 + s * 64}']) for k in range(2)]
            st.groups.append((rd, self.chain_group(g, False, lambda qb: R('v', Sreg(j & 1, jb, qb)),
                                                   lambda qb, k: R('a', A_Q + ((2 * sp + k) * 3 + qb) * 4), seen,
                                                   (lambda qb: '0') if zero else (lambda qb: R('v', V_NM + qb * 4)))))
        return st

    def preg(self, j): return V_S + ((j + 1) & 1) * 24 if j == 31 else V_P

    def pv(self, j):
        tile = ('V', j)
        st = Step(tile)
        P = self.preg(j)
        if self.o.lmfma:
            lm = []
            for qb in (2, 1, 0):
                d = R('a', A_L + qb * 4)
                lm.append((lambda f, d=d, qb=qb: mfma(d, R('a', A_ONE), R('v', P + qb * 4), d if j else '0'), None))
            st.groups.append(([], lm))
        for g in range(8):
            ms = []
            for k in range(2):
                for qb in ((0, 1, 2) if k == 0 else (2, 1, 0)):
                    d = R(*Oreg(2 * g + k, qb))
                    ms.append((lambda f, d=d, qb=qb: mfma(d, f, R('v', P + qb * 4), d if j else '0'), k))
            st.groups.append(([self.tr_reads(tile, V_VA, [db * 32, 512 + db * 32]) for db in (2 * g, 2 * g + 1)], ms))
        return st

    def oproj(self, c, half, seen):
        tile = ('O', 2 * c + half)
        st = Step(tile)
        if c == 0: order = [(cb, tp) for tp in range(2) for cb in range(4)]
        else: order = [(cb, tp if cb % 2 == 0 else 1 - tp) for cb in range(4) for tp in range(2)]
        for g, (cb, tp) in enumerate(order):
            rd = [self.tr_reads(tile, V_VA, [2 * t * 128 + cb * 32, (2 * t + 1) * 128 + cb * 32]) for t in (2 * tp, 2 * tp + 1)]
            st.groups.append((rd, self.chain_group(g, True, lambda qb: R('v', V_ACC2[c & 1] + (cb * 3 + qb) * 4),
                                                   lambda qb, k: R('v', Obreg(4 * half + 2 * tp + k, qb)), seen, lambda qb: '0')))
        return st

    def yregs(self, par): return [Sreg(par, jb, qb) + r for jb in range(2) for qb in range(3) for r in range(4)]
    def sm_ops(self, j):
        res, prev = [], None
        ys = self.yregs(j & 1)
        for i, y in enumerate(ys):
            ops = [f'  v_exp_f32 v{y}, v{y}']
            if prev: ops.append(prev)
            prev = None if self.o.lmfma else f'  v_add_f32 v{V_L + (i // 4) % 3}, v{V_L + (i // 4) % 3}, v{y}'
            res.append(ops)
        return res, prev
    def sm_cvt(self, j, jb):
        par, P = j & 1, self.preg(j)
        return [f'  v_cvt_pk_bf16_f32 v{P + qb * 4 + jb * 2 + i}, v{Sreg(par, jb, qb) + 2 * i}, v{Sreg(par, jb, qb) + 2 * i + 1}' for qb in range(3) for i in range(2)]
    def sm_head(self, j):
        return [x for ops in self.sm_ops(j)[0][:self.o.nexp] for x in ops]
    def sm_tail(self, j, done):
        ops, last = self.sm_ops(j)
        res = [x for e in ops[done:] for x in e]
        c0, c1 = self.sm_cvt(j, 0), self.sm_cvt(j, 1)
        return res + c0 + ([last] if last else []) + c1
    def xlane(self, regs, op):
        res = []
        for sw in ('v_permlane32_swap_b32', 'v_permlane16_swap_b32'):
            res += [f'  v_mov_b32 v{t}, v{x}' for x, t in regs]
            res += ['  s_nop 1']
            res += [f'  {sw} v{x}, v{t}' for x, t in regs]
            res += [f'  {op} v{x}, v{x}, v{t}' for x, t in regs]
        return res
    def rowmax(self, par, first):
        res = []
        for qb in range(3):
            y = [Sreg(par, jb, qb) + r for jb in range(2) for r in range(4)]
            t = V_T + 2 * qb
            res.append(f'  v_max_f32 v{t}, v{y[0]}, v{y[1]}' if first else f'  v_max3_f32 v{t}, v{t}, v{y[0]}, v{y[1]}')
            res += [f'  v_max3_f32 v{t}, v{t}, v{y[i]}, v{y[i + 1]}' for i in (2, 4, 6)]
        return res
    def setmax(self):
        res = self.xlane([(V_T + 2 * qb, V_T + 2 * qb + 1) for qb in range(3)], 'v_max_f32')
        res += [f'  v_sub_f32 v{V_NM + qb * 4 + r}, 0, v{V_T + 2 * qb}' for qb in range(3) for r in range(4)]
        if not self.o.lmfma: res += [f'  v_mov_b32 v{V_L + qb}, 0' for qb in range(3)]
        return res

    def oconv(self, t):
        res = []
        for qb in range(3):
            src = []
            for jj in range(2):
                k, b = Oreg(2 * t + jj, qb)
                if k == 'a':
                    tmp = V_OUT + (qb * 2 + jj) * 4
                    res += [f'  v_accvgpr_read_b32 v{tmp + r}, a{b + r}' for r in range(4)]
                    b = tmp
                src.append(b)
                res += [f'  v_mul_f32 v{b + r}, v{b + r}, v{V_AL + qb}' for r in range(4)]
            res += [f'  v_cvt_pk_bf16_f32 v{Obreg(t, qb) + jj * 2 + i}, v{src[jj] + 2 * i}, v{src[jj] + 2 * i + 1}' for jj in range(2) for i in range(2)]
        return res
    def pout(self, c):
        res = []
        for qb in range(3):
            for p in range(2):
                e = qb * 2 + p
                q = V_OUT + e * 4
                for jj in range(2):
                    b = V_ACC2[c & 1] + ((2 * p + jj) * 3 + qb) * 4
                    res += [('txt', f'  v_cvt_pk_bf16_f32 v{q + jj * 2 + i}, v{b + 2 * i}, v{b + 2 * i + 1}') for i in range(2)]
                res.append(('txt', f'  s_mov_b32 s{S_SO}, {(c * 24 + e) * 16384}'))
                res.append(('vm', f'  buffer_store_dwordx4 {R("v", q)}, v{V_PO}, {srd(S_P)}, s{S_SO} offen%POL%', ('st', c)))
        return res
    def publish(self, stage):
        return [('txt', f'  v_mov_b32 v{V_FV}, {stage}'),
                ('vm', f'  buffer_store_dword v{V_FV}, v{V_FO}, {srd(S_FL)}, 0 offen%POL%', ('fl', stage))]
    def poll_load(self, stage):
        return [('vm', f'  buffer_load_dword v{V_RA + 8}, v{V_FR}, {srd(S_FL)}, 0 offen sc1', ('poll', stage))]
    def poll_check(self, stage):
        return [('vmwait', [('poll', stage)]), ('txt', f'  v_cmp_gt_u32 vcc, {stage}, v{V_RA + 8}'), ('txt', f'  s_cbranch_vccnz @spin{stage}')]
    def red_loads(self, stage):
        b = A_RB[(stage - 1) % 3]
        sr = S_RD if stage == 4 else S_R
        res = []
        for h in range(16):
            if h % 4 == 0: res.append(('txt', f'  s_mov_b32 s{S_T2}, {(stage - 1) * 48 * 16384 + h * 1024}'))
            res.append(('vm', f'  buffer_load_dwordx4 {R("a", b + 2 + 4 * h)}, v{V_RO}, {srd(sr)}, s{S_T2} offen offset:{(h % 4) * 1024} sc1', ('red', stage)))
        return res
    def red_mfma(self, stage):
        b = A_RB[(stage - 1) % 3]
        res = [('vmwait', [('red', stage)])]
        for par in range(2):
            d = R('v', V_RA + 4 * par)
            for k in range(par, 17, 2): res.append(('txt', mfma(d, R('v', V_SEL), R('a', b + 4 * k), d if k > 1 else '0')))
        return res
    def red_out(self, stage):
        so = S_OUTD if stage == 4 else S_OUT
        res = [('txt', f'  v_cvt_pk_bf16_f32 v{V_RA + 4 * par + i}, v{V_RA + 4 * par + 2 * i}, v{V_RA + 4 * par + 2 * i + 1}') for par in range(2) for i in range(2)]
        res += [('vm', f'  buffer_store_dwordx2 {R("v", V_RA + 4 * par, 2)}, v{V_OA}, {srd(so)}, s{S_OO} offen offset:{(stage - 1) * 256 + 32 * par}', ('out', stage)) for par in range(2)]
        return res
    def red_setup(self):
        a = Asm()
        a(f"""
  v_mbcnt_lo_u32_b32 v0, -1, 0
  v_mbcnt_hi_u32_b32 v0, -1, v0
  v_lshlrev_b32 v{V_RO}, 4, v0
  v_and_b32 v{V_RA}, 15, v0
  v_lshrrev_b32 v{V_RA+1}, 4, v0
  v_lshlrev_b32 v{V_FR}, 2, v{V_RA}
  v_mul_u32_u24 v{V_OA}, 1792, v{V_RA}
  v_lshl_add_u32 v{V_OA}, v{V_RA+1}, 3, v{V_OA}
  v_lshl_add_u32 v{V_FO}, v0, 8, s{S_W}
  v_lshlrev_b32 v{V_FO}, 8, v{V_FO}
  v_lshl_add_u32 v{V_FO}, s{S_H}, 2, v{V_FO}
  v_lshlrev_b32 v{V_RA+1}, 2, v{V_RA+1}
  v_sub_u32 v{V_RA}, v{V_RA}, v{V_RA+1}
  v_and_b32 v{V_RA+1}, 1, v{V_RA}
  v_lshlrev_b32 v{V_RA+1}, 4, v{V_RA+1}
  v_mov_b32 v{V_RA+2}, 0x3f80
  v_lshlrev_b32 v{V_RA+1}, v{V_RA+1}, v{V_RA+2}
  v_lshrrev_b32 v{V_RA}, 1, v{V_RA}
  v_cmp_eq_u32 vcc, 0, v{V_RA}
  v_accvgpr_write_b32 a0, 0
  v_accvgpr_write_b32 a1, 0
  v_cndmask_b32 v{V_SEL}, 0, v{V_RA+1}, vcc
  v_cndmask_b32 v{V_SEL+2}, 0, v{V_RA+1}, vcc
  v_cmp_eq_u32 vcc, 1, v{V_RA}
  v_accvgpr_write_b32 a66, 0
  v_accvgpr_write_b32 a67, 0
  v_cndmask_b32 v{V_SEL+1}, 0, v{V_RA+1}, vcc
  v_cndmask_b32 v{V_SEL+3}, 0, v{V_RA+1}, vcc
  v_accvgpr_write_b32 a132, 0
  v_accvgpr_write_b32 a133, 0
  v_accvgpr_write_b32 a198, 0
  v_accvgpr_write_b32 a199, 0""")
        return a.lines

    def build_steps(self):
        o = self.o
        seen = set()
        steps = [self.qproj(t, seen) for t in range(14)]
        for k in range(2, 11): steps[k - 1].need.append(('X', k))
        steps[0].need += [('X', 0), ('X', 1)]
        steps[2].need.append('flinit')
        steps[2].add(('vm', f'  buffer_atomic_add_x2 v[{V_ONE}:{V_ONE+1}], v{V_L}, {srd(S_DBG)}, 0 offen sc1', 'atom'), 40)
        for s in range(o.qconv_early):
            for x in self.qconv(s): steps[13].add(x, 4, 45)
        st = self.qk(0, zero=True, smajor=True)
        for s in range(o.qconv_early, 8):
            if s < 2: st.pre += self.qconv(s) + ['  s_nop 1']
            else:
                for x in self.qconv(s): st.add(x, 0 if s < 6 else 4, 12 * (s // 2) - 3)
        st.post += ['  s_nop 7'] + self.rowmax(0, True) + self.setmax()
        st.post += [f'  v_add_f32 v{Sreg(0, jb, qb) + r}, v{Sreg(0, jb, qb) + r}, v{V_NM + qb * 4}' for jb in range(2) for qb in range(3) for r in range(4)]
        st.post += self.sm_head(0) + ['L_attn:']
        steps.append(st)
        self.i_attn = len(steps)
        nl = 3 if o.lmfma else 0
        for j in range(32):
            if j < 31:
                st = self.qk(j + 1)
                for x in self.sm_tail(j, o.nexp): st.add(x, 0, 45)
                steps.append(st)
            st = self.pv(j)
            if j < 30:
                for i, x in enumerate(self.sm_head(j + 1)): st.add(x)
                if j == 24: st.add(('vm', f'  buffer_load_dwordx2 v[{V_AL+1}:{V_AL+2}], off, {srd(S_DBG)}, 0 sc1', 'dbg'))
                if j == 29:
                    st.add(('vmwait', ['dbg']))
                    for i in range(2): st.add(f'  v_readfirstlane_b32 s{S_RET+i}, v{V_AL+1+i}')
            elif j == 30:
                for x in self.sm_tail(31, 0): st.add(x, 0, 45 + nl)
            else:
                if o.lmfma:
                    for qb in range(3): st.add(f'  v_accvgpr_read_b32 v{V_L + qb}, a{A_L + qb * 4}', 6)
                else:
                    for x in self.xlane([(V_L + qb, V_AL + qb) for qb in range(3)], 'v_add_f32'): st.add(x)
                st.add(f'  v_max3_f32 v{V_KA}, v{V_L}, v{V_L+1}, v{V_L+2}')
                for qb in range(3): st.add(f'  v_rcp_f32 v{V_AL + qb}, v{V_L + qb}')
                st.add(f'  v_cmp_nge_f32 vcc, s{S_THR}, v{V_KA}')
                st.add('  s_cbranch_vccnz @unsafe', 0, nl + 28)
                for t in range(o.oconv_early):
                    for x in self.oconv(t): st.add(x, nl + 6 * t + 5 + 4, nl + 45)
            steps.append(st)
        self.i_o = len(steps)
        for c in range(7):
            seen = set()
            for half in range(2):
                st = self.oproj(c, half, seen)
                if c == 0:
                    for t in range(o.oconv_early, 8):
                        home = 0 if t < 6 else 1
                        if home == half:
                            assert t >= 2
                            for x in self.oconv(t): st.add(x, 4 if half == 0 else 0, min(45, 24 * (t // 2 - 2 * half) - 3))
                    if half == 1:
                        for x in self.red_setup(): st.add(x)
                if c > 0 and half == 0:
                    for x in self.pout(c - 1): st.add(x, 4)
                steps.append(st)
        O = steps[self.i_o:]
        O[0].after_bar += [('txt', f'  v_mov_b32 v0, {self.LDSF}'), ('lds', f'  ds_read_b32 v0, v0', 'flag')]
        steps[self.i_o - 1].post += [('ldswait', 'flag'), ('txt', f'  v_cmp_lt_u32 vcc, s{S_RETRY}, v0'), ('txt', '  s_cbranch_vccnz L_fallback')]
        O[0].post += [('txt', 'L_dbgchk:'),
                      ('txt', f'  s_lshr_b64 s[62:63], s[{S_RET}:{S_RET+1}], s{S_SPIN}'), ('txt', '  s_and_b32 s62, s62, 0xff'),
                      ('txt', '  s_cmp_eq_u32 s62, 16'), ('txt', '  s_cbranch_scc0 L_notlocal'), ('txt', '%SPLIT%')]
        for k, (sb, sp) in enumerate(((6, 7), (10, 11))):
            O[sb].need.append(('st', 2 * k + 1))
            O[sb].after_bar += self.publish(k + 1)
            for x in self.poll_load(k + 1): O[sp].add(x, 0)
            for x in self.poll_check(k + 1): O[sp].add(x, 30)
            for i, x in enumerate(self.red_loads(k + 1)): O[sp].add(x, 30)
        O[9].post += self.red_mfma(1)
        for x in self.red_out(1): O[11].add(x, 0)
        t = [('vmwait', [('st', 5)]), ('txt', '  s_barrier')] + self.publish(3) + [('txt', '  s_nop 3')] + self.pout(6)
        t += self.poll_load(3) + self.red_mfma(2)
        t += [('vmwait', [('st', 6)]), ('txt', '  s_barrier')] + self.publish(4)
        t += self.poll_check(3) + self.red_loads(3) + self.red_out(2) + self.poll_load(4) + self.poll_check(4) + self.red_loads(4)
        t += self.red_mfma(3) + [('txt', '  s_nop 7')] + self.red_out(3) + self.red_mfma(4) + [('txt', '  s_nop 7')] + self.red_out(4)
        O[13].post += t
        return steps

    def emit_steps(self, steps, plan):
        o = self.o
        grs = [(si, gi) for si, st in enumerate(steps) for gi, g in enumerate(st.groups) if g[0]]
        gidx = {k: n for n, k in enumerate(grs)}
        S = dict(n=0, done=-1)
        lastop = {}
        def fbase(n, k): return A_F + ((2 * n + k) % NF) * 4
        def reads(n):
            if n >= len(grs): return []
            si, gi = grs[n]
            return [('lds', r, n) for k, rd in enumerate(steps[si].groups[gi][0]) for r in rd(fbase(n, k))]
        def barrier(si):
            return [('vmwait', [steps[si].tile] + steps[si].need), ('txt', '  s_barrier')] + steps[si].after_bar
        def ldswait(key, out):
            if lastop[key] > S['done']:
                cnt = S['n'] - 1 - lastop[key]
                out.append(f'  s_waitcnt lgkmcnt({cnt})')
                S['done'] = lastop[key]
        def put(item, out):
            if isinstance(item, str): out.append(item)
            elif item[0] == 'vmwait': out.append(self.vm_wait(item[1]))
            elif item[0] == 'ldswait': ldswait(item[1], out)
            elif item[0] == 'lds':
                out.append(item[1]); lastop[item[2]] = S['n']; S['n'] += 1
                assert S['n'] - 1 - S['done'] <= 15, item
            elif item[0] == 'vm':
                pv = self.prev.get(item[2])
                if pv and pv[0] == 'X': assert lastop[pv] <= S['done'], item
                out.append(item[1]); self.vm.append(item[2])
            else: out.append(item[1])
        start, tot = [], 0
        for st in steps:
            start.append(tot); tot += sum(len(g[1]) for g in st.groups)
        mand = [[] for _ in range(tot)]
        bar_gap = {0: -1}
        for si, st in enumerate(steps):
            pos = start[si]
            for gi, g in enumerate(st.groups):
                if g[0]:
                    n = gidx[(si, gi)] + o.lead
                    items = reads(n)
                    k0 = 0
                    if n < len(grs) and grs[n - 1][0] != grs[n][0]:
                        mand[pos] += barrier(grs[n][0]); bar_gap[grs[n][0]] = pos; k0 = 1
                    slots = ([0, 3], [0, 1, 3, 4])[len(items) > 2] if not k0 else ([1, 3], [1, 2, 3, 4])[len(items) > 2]
                    for it, k in zip(items, slots): mand[pos + k].append(it)
                pos += len(g[1])
        self.issued_at_attn = [t for b in plan for t in plan[b] if b <= self.i_attn and t[0] in 'KV']
        for b, tiles in plan.items():
            if b < 0 or not tiles: continue
            prs = [(t, p) for t in tiles for p in self.dma(t)]
            room = bar_gap.get(b + 1, tot) - bar_gap[b] - 3
            stp = min(o.dmastep, room // len(prs))
            if b == self.i_attn: stp = 4
            for i, (t, (setup, ld)) in enumerate(prs):
                g0 = bar_gap[b] + o.dma0 + i * stp
                mand[g0] += [('txt', x) for x in setup]
                mand[g0 + 1] = [('vm', ld, t)] + mand[g0 + 1]
                assert g0 + 1 < bar_gap.get(b + 1, tot)
                if b == self.i_attn: assert g0 + 1 < start[b]
        for k in range(2, 11):
            for i, pr in enumerate(self.xreads(k)): mand[bar_gap[k - 1] + 2 + 6 * i] += pr
        head = []
        for it in barrier(0) + [x for k in range(2) for pr in self.xreads(k) for x in pr]: put(it, head)
        put(('ldswait', ('X', 1)), head)
        for n in range(o.lead):
            for it in reads(n): put(it, head)
        self.reentry_reads = [it[1] for n in range(gidx[(self.i_attn, 0)], gidx[(self.i_attn, 0)] + o.lead) for it in reads(n)]
        texts = []
        for si, st in enumerate(steps):
            out = []
            ms = [(gi, k, m) for gi, g in enumerate(st.groups) for k, m in enumerate(g[1])]
            n = len(ms)
            md = mand[start[si]:start[si] + n]
            first = {k: gidx[(si, gi)] for k, (gi, kk, m) in enumerate(ms) if kk == 0 and st.groups[gi][0]}
            mc = [len(x) + (1 if (k + 1 in first or k + 1 == n) else 0) for k, x in enumerate(md)]
            fl = list(st.fill)
            ic = lambda it: cost(it[1]) if it[0] in ('txt', 'vm', 'lds') else 1
            dls, d = [], n - 1
            for x in reversed(fl):
                d = min(d, x[2]) if x[2] is not None else d
                dls.append(d)
            dls.reverse()
            tr = self.trace()
            if tr: assert not any('m0' in it[1] for it in mand[start[si] - 1] if it[0] == 'txt') or si == 0
            out += tr
            for it in st.pre: put(it, out)
            if st.tile[0] == 'W' and st.tile[1] % 2 == 0: ldswait(('X', (3 * (st.tile[1] // 2) + 2) // 2), out)
            carry, fp = 0.0, 0
            for k, (gi, kk, (m, fk)) in enumerate(ms):
                if k in first: ldswait(first[k], out)
                out.append(m(None if fk is None else R('a', fbase(gidx[(si, gi)], fk))))
                for it in md[k]: put(it, out)
                level, due = 2.0, 0
                for i in range(fp, len(fl)):
                    due += ic(fl[i][0])
                    if i + 1 == len(fl) or dls[i + 1] != dls[i]:
                        dd = max(dls[i], k)
                        level = max(level, (due + sum(mc[k:dd + 1])) / (dd - k + 1))
                bud = level - mc[k] + carry
                while fp < len(fl) and fl[fp][1] <= k and (dls[fp] <= k or ic(fl[fp][0]) <= bud + 1e-6):
                    put(fl[fp][0], out)
                    bud -= ic(fl[fp][0]); fp += 1
                carry = max(-2.0, min(bud, 1.0)) if level > 2.0 else 0.0
            assert fp == len(fl), (si, fp, len(fl))
            for it in st.post: put(it, out)
            texts.append(out)
        return head, texts

    def resolve(self, lines, pol=''):
        res = []
        for l in lines:
            l = l.replace('%POL%', pol)
            if '@' in l:
                tgt = l.split('@')[1]
                k = self.nsite; self.nsite += 1
                res += [l.split('@')[0] + f'L_stub{k}', f'L_back{k}:']
                if tgt == 'unsafe':
                    self.stubs += [f'L_stub{k}:', f'  v_mov_b32 v0, {self.LDSF}', f'  v_mov_b32 v{V_KA}, 1', f'  ds_write_b32 v0, v{V_KA}',
                                   '  s_waitcnt lgkmcnt(0)', f'  s_branch L_back{k}']
                else:
                    stage = int(tgt[4:])
                    self.stubs += [f'L_stub{k}:', f'  s_mov_b32 s{S_LOOP}, {self.o.spin}', f'L_spin{k}:',
                                   self.poll_load(stage)[0][1], f'  s_sub_u32 s{S_LOOP}, s{S_LOOP}, 1', '  s_waitcnt vmcnt(0)',
                                   f'  v_cmp_gt_u32 vcc, {stage}, v{V_RA + 8}', f'  s_cbranch_scc1 L_back{k}', f'  s_cbranch_vccnz L_spin{k}', f'  s_branch L_back{k}']
            else: res.append(l)
        return res

    def prologue(self, plan):
        o = self.o
        a = Asm()
        a(f"""
  s_cmp_ge_u32 s2, 256
  s_cbranch_scc1 L_end""")
        if o.trace: a('  s_memrealtime s[90:91]\n  s_memtime s[92:93]\n  s_mov_b32 s94, 0')
        w, l = 40, 0
        a(f"""
  s_load_dwordx16 s[64:79], s[0:1], 0
  s_load_dwordx8 s[80:87], s[0:1], 64
  s_load_dwordx2 s[{S_P}:{S_P+1}], s[0:1], 96
  s_getpc_b64 s[62:63]
  v_lshlrev_b32 v50, 7, v0
  global_load_dword v51, v50, s[62:63]
  v_lshrrev_b32 v{w}, 6, v0
  v_and_b32 v0, 63, v0
  v_readfirstlane_b32 s{S_W}, v{w}
  s_and_b32 s{S_ITEM}, s2, 7
  s_lshr_b32 s3, s2, 3
  s_lshl_b32 s{S_ITEM}, s{S_ITEM}, 5
  s_add_u32 s{S_ITEM}, s{S_ITEM}, s3
  s_and_b32 s{S_H}, s{S_ITEM}, 15
  s_bfe_u32 s60, s{S_ITEM}, 0x30004      ; b
  s_mul_i32 s{S_LDSW}, s{S_W}, {4 * PIECE}
  v_lshrrev_b32 v41, 3, v0
  v_lshrrev_b32 v42, 4, v0
  v_and_b32 v43, 7, v0
  v_and_b32 v44, 15, v0
  v_mad_u32_u24 v45, v{w}, 48, v41
  v_mul_u32_u24 v45, 896, v45
  v_xor_b32 v46, v43, v42
  v_lshl_add_u32 v{V_XD}, v46, 4, v45
  v_xor_b32 v{V_XD+1}, 64, v{V_XD}
  v_lshrrev_b32 v45, 5, v0
  v_and_b32 v46, 1, v42
  v_lshlrev_b32 v45, 3, v45
  v_add_u32 v45, v45, v46
  v_lshl_add_u32 v45, v{w}, 1, v45
  v_lshlrev_b32 v45, 15, v45
  v_lshl_add_u32 v{V_WQ}, v44, 4, v45
  s_waitcnt lgkmcnt(0)
  s_cmp_ge_u32 s{S_ITEM}, 128
  s_cselect_b64 s[{S_X}:{S_X+1}], s[74:75], s[64:65]
  s_cselect_b64 s[{S_K}:{S_K+1}], s[76:77], s[66:67]
  s_cselect_b64 s[{S_V}:{S_V+1}], s[78:79], s[68:69]
  s_cselect_b64 s[{S_WQ}:{S_WQ+1}], s[80:81], s[70:71]
  s_cselect_b64 s[{S_WO}:{S_WO+1}], s[82:83], s[72:73]
  s_mul_i32 s61, s60, 172032
  s_add_u32 s{S_X}, s{S_X}, s61
  s_addc_u32 s{S_X+1}, s{S_X+1}, 0
  s_mov_b32 s{S_X+2}, 172032
  s_mov_b32 s{S_X+3}, 0x20000
  s_lshl_b32 s61, s{S_H}, 9
  s_add_u32 s{S_WQ}, s{S_WQ}, s61
  s_addc_u32 s{S_WQ+1}, s{S_WQ+1}, 0
  s_sub_u32 s{S_WQ+2}, {448 * 8192}, s61
  s_mov_b32 s{S_WQ+3}, 0x20000""")
        self.vm.append('pf')
        for t in plan[-1]:
            for setup, ld in self.dma(t):
                for x in setup: a(x)
                a(ld); self.vm.append(t)
        a('%CODEPF%')
        self.vm += ['pf'] * (o.npf - 1)
        a(f"""
  s_lshr_b32 s3, s{S_ITEM}, 4
  s_lshl_b32 s61, s3, 8
  s_add_u32 s61, s61, {FLAG_OFF}
  s_add_u32 s{S_FL}, s{S_P}, s61
  s_addc_u32 s{S_FL+1}, s{S_P+1}, 0
  s_mov_b32 s{S_FL+2}, 64
  s_mov_b32 s{S_FL+3}, 0x20000
  v_lshl_add_u32 v45, v0, 2, v{w}
  v_lshlrev_b32 v{V_L}, 8, v45
  v_lshl_add_u32 v45, s{S_H}, 2, v{V_L}
  v_mov_b32 v46, 0
  v_mov_b32 v47, {self.LDSF}
  buffer_store_dword v46, v45, {srd(S_FL)}, 0 offen sc1
  ds_write_b32 v47, v46
  s_lshl_b32 s61, s3, 3
  s_add_u32 s{S_DBG}, s86, s61
  s_addc_u32 s{S_DBG+1}, s87, 0
  s_mov_b32 s{S_DBG+2}, 8
  s_mov_b32 s{S_DBG+3}, 0x20000
  s_getreg_b32 s{S_XCC}, hwreg(HW_REG_XCC_ID, 0, 3)
  s_lshl_b32 s{S_SPIN}, s{S_XCC}, 3
  s_lshl_b64 s[62:63], 1, s{S_SPIN}
  v_mov_b32 v{V_ONE}, s62
  v_mov_b32 v{V_ONE+1}, s63
  s_mul_i32 s61, s3, {PART_BYTES}
  s_add_u32 s{S_P}, s{S_P}, s61
  s_addc_u32 s{S_P+1}, s{S_P+1}, 0
  s_lshl_b32 s61, s{S_W}, 4
  s_add_u32 s61, s61, s{S_H}
  s_lshl_b32 s62, s61, 14
  s_add_u32 s{S_R}, s{S_P}, s62
  s_addc_u32 s{S_R+1}, s{S_P+1}, 0
  s_sub_u32 s62, {PART_BYTES}, s62
  s_cmp_lt_u32 s61, 48
  s_cselect_b32 s{S_R+2}, s62, 0
  s_cselect_b32 s{S_OUT+2}, {8 * 192 * 896 * 2}, 0
  s_mov_b32 s{S_R+3}, 0x20000
  s_mov_b64 s[{S_RD}:{S_RD+1}], s[{S_R}:{S_R+1}]
  s_cmp_lt_u32 s61, 24
  s_cselect_b32 s{S_RD+2}, s62, 0
  s_cselect_b32 s{S_OUTD+2}, {8 * 192 * 896 * 2}, 0
  s_cselect_b32 s63, 0, 24
  s_cselect_b32 s{S_OO}, 0, 128
  s_mov_b32 s{S_RD+3}, 0x20000
  s_mov_b64 s[{S_OUT}:{S_OUT+1}], s[84:85]
  s_mov_b64 s[{S_OUTD}:{S_OUTD+1}], s[84:85]
  s_mov_b32 s{S_OUT+3}, 0x20000
  s_mov_b32 s{S_OUTD+3}, 0x20000
  s_sub_u32 s61, s61, s63
  s_and_b32 s62, s61, 1
  s_lshl_b32 s62, s62, 6
  s_add_u32 s{S_OO}, s{S_OO}, s62
  s_lshr_b32 s61, s61, 1
  s_mul_i32 s62, s60, 12
  s_add_u32 s61, s61, s62
  s_mul_i32 s61, s61, {16 * 1792}
  s_add_u32 s{S_OO}, s{S_OO}, s61
  s_lshr_b32 s61, s3, 3
  s_mul_i32 s61, s61, 896
  s_add_u32 s{S_OO}, s{S_OO}, s61
  s_lshl_b32 s61, s{S_H}, 10
  s_add_u32 s{S_P}, s{S_P}, s61
  s_addc_u32 s{S_P+1}, s{S_P+1}, 0
  s_mov_b32 s{S_P+2}, {PART_BYTES - 15 * 1024}
  s_mov_b32 s{S_P+3}, 0x20000
  s_and_b32 s61, s{S_ITEM}, 127
  s_lshl_b32 s61, s61, 19
  s_add_u32 s{S_K}, s{S_K}, s61
  s_addc_u32 s{S_K+1}, s{S_K+1}, 0
  s_mov_b32 s{S_K+2}, 0x80000
  s_mov_b32 s{S_K+3}, 0x20000
  s_add_u32 s{S_V}, s{S_V}, s61
  s_addc_u32 s{S_V+1}, s{S_V+1}, 0
  s_mov_b32 s{S_V+2}, 0x80000
  s_mov_b32 s{S_V+3}, 0x20000
  s_mul_i32 s61, s{S_H}, 229376
  s_add_u32 s{S_WO}, s{S_WO}, s61
  s_addc_u32 s{S_WO+1}, s{S_WO+1}, 0
  s_mov_b32 s{S_WO+2}, 229376
  s_mov_b32 s{S_WO+3}, 0x20000
  s_mov_b32 s{S_KOFF}, 0xffffc000
  s_mov_b32 s{S_VOFF}, 0xffffc000
  s_mov_b32 s{S_C}, {f32(math.log2(math.e) / 16)}
  s_mov_b32 s{S_THR}, {f32(o.thr)}
  s_mov_b32 s{S_RETRY}, 0
  s_and_b32 s61, s{S_H}, 1
  s_lshl_b32 s61, s61, 1
  v_lshlrev_b32 v45, 4, v0
  v_lshl_add_u32 v{V_KV}, v{w}, 12, v45
  v_mul_u32_u24 v46, {6 * 16384}, v{w}
  v_add_u32 v{V_PO}, v46, v45
  v_lshl_add_u32 v45, v41, 2, v{w}
  v_mul_u32_u24 v45, {4 * 896}, v45
  v_xor_b32 v46, s61, v43
  v_lshl_add_u32 v{V_WO}, v46, 4, v45
  v_mul_u32_u24 v45, {PIECE}, v44
  v_lshl_add_u32 v{V_KA}, v42, 4, v45
  v_lshrrev_b32 v45, 2, v0
  v_and_b32 v46, 3, v0
  v_mul_u32_u24 v45, {PIECE}, v45
  v_lshl_add_u32 v{V_VA}, v46, 3, v45
  v_lshl_add_u32 v{V_WA}, v46, 4, v45""")
        self.vm.append('flinit')
        for b in (V_KA, V_VA, V_WA):
            for i in (1, 2): a(f'  v_add_u32 v{b + i}, {3 * i * SLOT}, v{b}')
        a(f"""
  v_lshrrev_b32 v45, 1, v44
  v_xor_b32 v45, v45, v42
  v_lshlrev_b32 v45, 4, v45
  v_lshl_add_u32 v45, v44, 7, v45
  v_add_u32 v{V_XA}, s{S_LDSW}, v45
  v_xor_b32 v45, 64, v45
  v_add_u32 v{V_XA+1}, s{S_LDSW}, v45
  v_mov_b32 v45, 0x3f803f80""")
        for i in range(4): a(f'  v_accvgpr_write_b32 a{A_ONE + i}, v45')
        a('  s_waitcnt lgkmcnt(0)')
        return a.lines

    def fallback(self):
        a = Asm()
        def plain_qk(st):
            for rd, ms in st.groups:
                for k, r in enumerate(rd):
                    for x in r(A_F + 4 * k): a(x)
                a('  s_waitcnt lgkmcnt(0)')
                for m, fk in ms: a(m(R('a', A_F + 4 * fk)))
            a('  s_nop 7')
        def load(t):
            for setup, ld in self.dma(t):
                for x in setup: a(x)
                a('  s_nop 0'); a(ld)
        a(f"""
L_fallback:
  s_waitcnt vmcnt(0) lgkmcnt(0)
  s_mov_b32 s{S_RETRY}, 1
  s_mov_b32 s{S_KOFF}, 0xffffc000
  s_mov_b32 s{S_LOOP}, 32
  v_mbcnt_lo_u32_b32 v0, -1, 0
  v_mbcnt_hi_u32_b32 v0, -1, v0
  v_and_b32 v{V_KA+1}, 15, v0
  v_lshrrev_b32 v0, 4, v0
  v_mul_u32_u24 v{V_KA+1}, {PIECE}, v{V_KA+1}
  v_lshl_add_u32 v{V_KA}, v0, 4, v{V_KA+1}
  v_add_u32 v{V_KA+1}, {3 * SLOT}, v{V_KA}
  v_add_u32 v{V_KA+2}, {6 * SLOT}, v{V_KA}""")
        for qb in range(3): a(f'  v_mov_b32 v{V_T + 2 * qb}, 0xff800000')
        a('L_fb_loop:\n  s_barrier')
        load(('K', 0))
        a('  s_waitcnt vmcnt(0)\n  s_barrier')
        plain_qk(self.qk(0, zero=True))
        for x in self.rowmax(0, False): a(x)
        a(f"""
  s_sub_u32 s{S_LOOP}, s{S_LOOP}, 1
  s_cmp_lg_u32 s{S_LOOP}, 0
  s_cbranch_scc1 L_fb_loop
  s_barrier
  s_mov_b32 s{S_KOFF}, 0xffffc000
  s_mov_b32 s{S_VOFF}, 0xffffc000""")
        for x in self.setmax(): a(x)
        for t in self.issued_at_attn: load(t)
        a('  s_waitcnt vmcnt(0)\n  s_barrier')
        plain_qk(self.qk(0))
        for x in self.sm_head(0) + self.reentry_reads: a(x)
        a('  s_branch L_attn')
        return a.lines

    def main_kernel(self):
        o = self.o
        steps = self.build_steps()
        plan = self.plan
        if o.verbose:
            for b in sorted(plan): print(b, plan[b], file=sys.stderr)
        pro = self.prologue(plan)
        head, texts = self.emit_steps(steps, plan)
        flat = pro + head + [l for t in texts for l in t]
        fb = self.fallback()
        bad = hazard.check([l.replace('@', 'L_').replace('%POL%', '') for l in flat if not l.startswith('%')], 'main') + hazard.check(fb, 'fallback')
        assert not bad
        per = 2 * self.NS if self.NS % 2 else max(self.NS, 4)
        per = per * 4 // math.gcd(per, 4)
        l0 = next((i for i in range(self.i_attn, self.i_o) if texts[i:i + per] == texts[i + per:i + 2 * per]), None) if o.fold else None
        body = pro + head
        if l0 is None:
            l0, n, per = self.i_attn, 1, self.i_o - self.i_attn
        else:
            n = 1
            while texts[l0 + per * n:l0 + per * n + per] == texts[l0:l0 + per]: n += 1
            print(f'loop: steps {l0}..{l0 + per * n - 1}, {n} trips', file=sys.stderr)
        self.banks = (l0, per * n, len(texts) - l0 - per * n + 2)
        for t in texts[:l0]: body += self.resolve(t)
        body += self.trace_bank(0)
        if n > 1: body += [f'  s_mov_b32 s{S_LOOP}, {n}', '.p2align 3', 'L_loop:']
        for t in texts[l0:l0 + per]: body += self.resolve(t)
        if n > 1: body += [f'  s_sub_u32 s{S_LOOP}, s{S_LOOP}, 1', f'  s_cmp_lg_u32 s{S_LOOP}, 0', '  s_cbranch_scc1 L_loop']
        body += self.trace_bank(1)
        rest = [l for t in texts[l0 + per * n:] for l in t]
        sp = rest.index('%SPLIT%')
        body += self.resolve(rest[:sp])
        body += self.resolve(rest[sp + 1:], o.ppol) + ['L_fin:', '  s_waitcnt vmcnt(0)'] + self.trace_out() + ['L_end:', '  s_endpgm', 'L_hot_end:']
        body += [f"""L_notlocal:
  s_add_u32 s62, s{S_RET}, s{S_RET+1}
  s_mul_i32 s62, s62, 0x01010101
  s_lshr_b32 s62, s62, 24
  s_cmp_eq_u32 s62, 16
  s_cbranch_scc1 L_remote
  s_add_u32 s{S_THR}, s{S_THR}, 1
  s_cmp_gt_u32 s{S_THR}, {int(f32(o.thr), 16) + o.spin}
  s_cbranch_scc1 L_remote
  buffer_load_dwordx2 v[{V_KA+1}:{V_KA+2}], off, {srd(S_DBG)}, 0 sc1
  s_waitcnt vmcnt(0)
  v_readfirstlane_b32 s{S_RET}, v{V_KA+1}
  v_readfirstlane_b32 s{S_RET+1}, v{V_KA+2}
  s_nop 1
  s_branch L_dbgchk
L_remote:"""]
        body += self.resolve(rest[sp + 1:], ' sc1') + ['  s_branch L_fin']
        body += self.stubs + fb
        pf = []
        for i in range(1, o.npf):
            pf += [f'  v_add_u32 v50, 0x8000, v50', f'  v_min_u32 v50, L_hot_end-{NAME}_kernel-256, v50']
            pf.append('  global_load_dword v51, v50, s[62:63]')
        k = body.index('%CODEPF%')
        return body[:k] + pf + body[k + 1:]

def main():
    ap = argparse.ArgumentParser()
    ap.add_argument('-o', default='k.s')
    for name, d in (('trace', 0), ('lead', 3), ('nslot', 9), ('first', 7), ('dma0', 2), ('dmastep', 6), ('nexp', 10), ('oconv_early', 2),
                    ('qconv_early', 1), ('lmfma', 1), ('fold', 0), ('npf', 3), ('spin', 100000), ('verbose', 0)):
        ap.add_argument('--' + name, type=int, default=d)
    ap.add_argument('--thr', type=float, default=2.0 ** 24)
    ap.add_argument('--wpol', default='')
    ap.add_argument('--xpol', default='')
    ap.add_argument('--ppol', default='')
    o = ap.parse_args()
    if o.ppol: o.ppol = ' ' + o.ppol
    g = Gen(o)
    k = NAME + '_kernel'
    a = Asm()
    a(HEADER)
    a(f'; @launch grid=(256,1,1) block=(256,1,1) lds={g.LDSF + 64}')
    body = g.main_kernel()
    if o.trace: a('; trace banks %d %d %d' % g.banks)
    a('.amdgcn_target "amdgcn-amd-amdhsa--gfx950"\n.text')
    a(kernel_open(k))
    for l in body: a(l)
    a('.section .rodata,"a"')
    a(descriptor(k, 512, 256))
    open(o.o, 'w').write(a.text())
main()
```
